```python
import torch

def _softmax(x, axis=-1):
    return torch.softmax(x, dim=axis)

def _gelu(x):
    return torch.nn.functional.gelu(x, approximate='tanh')

def _silu(x):
    return torch.nn.functional.silu(x)

def _sigmoid(x):
    return torch.sigmoid(x)

def _layernorm(x, axis=-1, eps=1e-05):
    m = x.mean(dim=axis, keepdim=True)
    v = x.var(dim=axis, keepdim=True, unbiased=False)
    return (x - m) / torch.sqrt(v + eps)

def _scatter_add(tgt, idx, src, axis=0):
    return tgt.clone().index_add_(axis, idx, src)

def _segment_sum(src, seg, n):
    out = torch.zeros((n,) + src.shape[1:], dtype=src.dtype)
    return out.index_add_(0, seg, src)

def _pad(x, pw):
    flat = tuple((v for pair in reversed(pw) for v in pair))
    return torch.nn.functional.pad(x, flat)
kernel_name = 'standalone__detection_seg_detr_decoder__vision'

def setup_inputs():

    _w = lambda a: (lambda t: t.to(torch.bfloat16) if t.is_floating_point() else t)(torch.as_tensor(a))
    H = W = 384 // 2 * 2
    C = 384
    Nq = 32
    return {'q': _w((lambda *s: torch.randn(*s, dtype=torch.bfloat16) * 0.05)(1, Nq, C)), 'feat_hi': _w((lambda *s: torch.randn(*s, dtype=torch.bfloat16) * 0.1)(1, H, W, C)), 'feat_lo': _w((lambda *s: torch.randn(*s, dtype=torch.bfloat16) * 0.1)(1, H // 2, W // 2, C)), 'lat_hi': _w((lambda *s: torch.randn(*s, dtype=torch.bfloat16) * 0.1)(C, C)), 'lat_lo': _w((lambda *s: torch.randn(*s, dtype=torch.bfloat16) * 0.1)(C, C)), 'wq': _w((lambda *s: torch.randn(*s, dtype=torch.bfloat16) * 0.1)(C, C)), 'wkv': _w((lambda *s: torch.randn(*s, dtype=torch.bfloat16) * 0.1)(C, 2 * C)), 'wo': _w((lambda *s: torch.randn(*s, dtype=torch.bfloat16) * 0.05)(C, C)), 'w1': _w((lambda *s: torch.randn(*s, dtype=torch.bfloat16) * 0.05)(C, 4 * C)), 'w2': _w((lambda *s: torch.randn(*s, dtype=torch.bfloat16) * 0.05)(4 * C, C))}

def reference(q, feat_hi, feat_lo, lat_hi, lat_lo, wq, wkv, wo, w1, w2):
    B, Nq, C = q.shape
    _, H, W, _ = feat_hi.shape
    lo = feat_lo @ lat_lo
    up = (lambda x, n, axis: torch.repeat_interleave(x, n, dim=axis))((lambda x, n, axis: torch.repeat_interleave(x, n, dim=axis))(lo, 2, axis=1), 2, axis=2)
    fused = feat_hi @ lat_hi + up
    mem = fused.reshape(B, H * W, C)
    qn = _layernorm(q, axis=-1)
    Q = qn @ wq
    KV = mem @ wkv
    K, V = (KV[..., :C].clone(), KV[..., C:].clone())
    scale = C ** (-0.5)
    logits = torch.einsum('bqc,bkc->bqk', Q, K) * scale
    P = _softmax(logits, axis=-1)
    O = torch.einsum('bqk,bkc->bqc', P, V)
    h = q + O @ wo
    hn = _layernorm(h, axis=-1)
    return h + _gelu(hn @ w1) @ w2
```

```python
NAME = 'standalone__detection_seg_detr_decoder__vision'
class Asm:
    def __init__(self): self.L = []
    def __call__(self, s=''):
        for line in s.strip('\n').split('\n'): self.L.append(line)
    def text(self): return '\n'.join(self.L) + '\n'
def kd(name, vgpr=256, sgpr=102, accum=None):
    if accum is None: accum = min(256, (vgpr + 3) // 4 * 4)
    return f'''.amdhsa_kernel {name}
  .amdhsa_next_free_vgpr {vgpr}
  .amdhsa_next_free_sgpr {sgpr}
  .amdhsa_accum_offset {accum}
  .amdhsa_group_segment_fixed_size 0
  .amdhsa_kernarg_size 104
  .amdhsa_user_sgpr_count 2
  .amdhsa_user_sgpr_kernarg_segment_ptr 1
  .amdhsa_system_sgpr_workgroup_id_x 1
.end_amdhsa_kernel'''
def head(name):
    return f'''.globl {name}
.p2align 8
.type {name},@function
{name}:'''
```

```python
import sys
from asmlib import *
WS_Q=0x0; WS_G=0x10000; WS_T2T=0xA0000; WS_A=0xF0000; WS_WOVT=0x100000; WS_OC=0x190000
WS_H=0x1A0000; WS_GM=0x1B0000; WS_ML=0x1D0000; WS_STAMP=0x1F0000; WS_PART=0x200000
WS_SIZE=452984832
ARG = dict(q=0, hi=8, lo=16, lat_hi=24, lat_lo=32, wq=40, wkv=48, wo=56, w1=64, w2=72, out=80, dbg=88, ws=96)
SZ = dict(q=24576, hi=113246208, lo=28311552, lat_hi=294912, lat_lo=294912, wq=294912, wkv=589824, wo=294912, w1=1179648, w2=1179648, out=24576, dbg=256, ws=WS_SIZE)
import struct
def f2u(x): return hex(struct.unpack('<I', struct.pack('<f', x))[0])
LOG2E = 1.4426950408889634

def srd(a, s, name):
    a(f's_load_dwordx2 s[{s}:{s+1}], s[0:1], {ARG[name]}')
def srd_fin(a, s, name):
    a(f's_and_b32 s{s+1}, s{s+1}, 0xffff\ns_mov_b32 s{s+2}, {SZ[name]}\ns_mov_b32 s{s+3}, 0x20000')

def allreduce_g(a, v, t, op):
    a(f'''v_mov_b32 v{t}, v{v}
s_nop 1
v_permlane32_swap_b32 v{t}, v{v}
s_nop 0
{op} v{v}, v{v}, v{t}
v_mov_b32 v{t}, v{v}
s_nop 1
v_permlane16_swap_b32 v{t}, v{v}
s_nop 0
{op} v{v}, v{v}, v{t}''')

def layernorm_f32(a, x0, n, dst0, t0):
    s, t, m, r = t0, t0+1, t0+2, t0+3
    a(f'v_mov_b32 v{s}, 0')
    for i in range(n): a(f'v_add_f32 v{s}, v{s}, v{x0+i}')
    allreduce_g(a, s, t, 'v_add_f32')
    a(f'v_mul_f32 v{m}, {f2u(1.0/(4*n))}, v{s}')
    a(f'v_mov_b32 v{s}, 0')
    for i in range(n):
        a(f'v_sub_f32 v{x0+i}, v{x0+i}, v{m}\nv_fmac_f32 v{s}, v{x0+i}, v{x0+i}')
    allreduce_g(a, s, t, 'v_add_f32')
    a(f'v_mov_b32 v{t}, {f2u(1e-5)}\nv_fmac_f32 v{t}, {f2u(1.0/(4*n))}, v{s}\nv_rsq_f32 v{r}, v{t}\ns_nop 0')
    for i in range(0, n, 2):
        a(f'v_mul_f32 v{x0+i}, v{x0+i}, v{r}\nv_mul_f32 v{x0+i+1}, v{x0+i+1}, v{r}\nv_cvt_pk_bf16_f32 v{dst0+i//2}, v{x0+i}, v{x0+i+1}')

def lane_ids(a):
    a('v_and_b32 v1, 15, v0\nv_bfe_u32 v2, v0, 4, 2')

def job_trans(a, tsrd, tstride, tsoff, dregs, K, trans_is_A, acc=16, raw=32, frag=8, vt=3, kbase=0):
    a('s_mov_b32 s90, 0x05040100\ns_mov_b32 s91, 0x07060302')
    nk = K // 32
    CH = 6
    for c0 in range(0, nk, CH):
        for s in range(c0, c0 + CH):
            for j in range(8):
                row = 32 * s + j + kbase
                a(f's_add_u32 s92, s{tsoff}, {row * tstride}')
                r = raw + (s - c0) * 16 + 2 * j
                a(f'buffer_load_dwordx2 v[{r}:{r+1}], v{vt}, s[{tsrd}:{tsrd+3}], s92 offen')
        a('s_waitcnt vmcnt(0)')
        for s in range(c0, c0 + CH):
            for c in range(4):
                f = frag + 4 * (c & 1)
                for r in range(4):
                    lo = raw + (s - c0) * 16 + 2 * (2 * r) + c // 2
                    hi = lo + 2
                    a(f'v_perm_b32 v{f+r}, v{hi}, v{lo}, s{90 + (c & 1)}')
                a('s_nop 1')
                d = dregs(s)
                C = f'v[{acc+4*c}:{acc+4*c+3}]'
                Cin = C if (s > 0 or kbase > 0) else '0'
                if trans_is_A: a(f'v_mfma_f32_16x16x32_bf16 {C}, v[{f}:{f+3}], v[{d}:{d+3}], {Cin}')
                else:          a(f'v_mfma_f32_16x16x32_bf16 {C}, v[{d}:{d+3}], v[{f}:{f+3}], {Cin}')
    a('s_nop 7\ns_nop 1')

def load_direct(a, srd_, vo, soff, dst, nk, koff=0):
    for s in range(nk):
        a(f'buffer_load_dwordx4 v[{dst+4*s}:{dst+4*s+3}], v{vo}, s[{srd_}:{srd_+3}], {soff} offen offset:{64*s+koff}')

def k_pre1(a):
    a(head('pre1_kernel'))
    a('s_cmp_ge_u32 s2, 444\ns_cbranch_scc1 P1_done')
    for s, n in ((8,'q'),(12,'wq'),(16,'wkv'),(20,'lat_hi'),(24,'lat_lo'),(28,'wo'),(32,'ws')): srd(a, s, n)
    lane_ids(a)
    a('s_waitcnt lgkmcnt(0)')
    for s, n in ((8,'q'),(12,'wq'),(16,'wkv'),(20,'lat_hi'),(24,'lat_lo'),(28,'wo'),(32,'ws')): srd_fin(a, s, n)
    a('''v_mul_u32_u24 v4, 768, v1
v_lshl_add_u32 v4, v2, 4, v4
v_mul_u32_u24 v5, 1536, v1
v_lshl_add_u32 v5, v2, 4, v5
s_cmp_ge_u32 s2, 300
s_cbranch_scc1 P1_t2
s_cmp_ge_u32 s2, 12
s_cbranch_scc1 P1_g''')
    a('''s_lshr_b32 s40, s2, 1      ; dtile
s_and_b32 s41, s2, 1       ; qtile
s_mul_i32 s42, s41, 12288''')
    load_direct(a, 8, 4, 's42', 128, 12)
    a('s_waitcnt vmcnt(0)')
    for i in range(48):
        a(f'v_lshlrev_b32 v{32+2*i}, 16, v{128+i}\nv_and_b32 v{33+2*i}, 0xffff0000, v{128+i}')
    layernorm_f32(a, 32, 96, 128, 8)
    a('v_mul_u32_u24 v3, 6144, v2\nv_lshl_add_u32 v3, v1, 3, v3\ns_lshl_b32 s43, s40, 7')
    job_trans(a, 12, 768, 43, lambda s: 128 + 4*s, 384, True)
    a(f's_add_u32 s44, s42, {WS_Q}\ns_add_u32 s44, s44, s43')
    a('s_branch P1_store16')
    a('''P1_g:
s_sub_u32 s40, s2, 12
s_mul_i32 s41, s40, 1366
s_lshr_b32 s41, s41, 16      ; dtile = x/48
s_mul_i32 s42, s41, 48
s_sub_u32 s42, s40, s42      ; jtile 0..47
s_cmp_ge_u32 s42, 24
s_cselect_b32 s20, s24, s20
s_cselect_b32 s21, s25, s21
s_cselect_b32 s45, 24, 0
s_sub_u32 s45, s42, s45
s_mul_i32 s45, s45, 12288''')
    load_direct(a, 20, 4, 's45', 128, 12)
    a('v_mul_u32_u24 v3, 12288, v2\nv_lshl_add_u32 v3, v1, 3, v3\ns_lshl_b32 s43, s41, 7')
    job_trans(a, 16, 1536, 43, lambda s: 128 + 4*s, 384, True)
    a(f's_mul_i32 s44, s42, 12288\ns_add_u32 s44, s44, {WS_G}\ns_add_u32 s44, s44, s43')
    a('P1_store16:')
    for r in range(4):
        a(f'v_cvt_pk_bf16_f32 v{32+2*r}, v{16+r}, v{20+r}\nv_cvt_pk_bf16_f32 v{33+2*r}, v{24+r}, v{28+r}')
    a('''v_mul_u32_u24 v6, 768, v1
v_lshl_add_u32 v6, v2, 5, v6
buffer_store_dwordx4 v[32:35], v6, s[32:35], s44 offen
buffer_store_dwordx4 v[36:39], v6, s[32:35], s44 offen offset:16
s_endpgm''')
    a('''P1_t2:
s_sub_u32 s40, s2, 300
s_mul_i32 s41, s40, 2731
s_lshr_b32 s41, s41, 16      ; ntile = x/24
s_mul_i32 s42, s41, 24
s_sub_u32 s42, s40, s42      ; etile
s_mul_i32 s45, s42, 24576''')
    load_direct(a, 16, 5, 's45', 128, 12, koff=768)
    a('v_mul_u32_u24 v3, 6144, v2\nv_lshl_add_u32 v3, v1, 3, v3\ns_lshl_b32 s43, s41, 7')
    job_trans(a, 28, 768, 43, lambda s: 128 + 4*s, 384, False)
    a(f'''s_mul_i32 s44, s41, {64*768}
s_lshl_b32 s46, s42, 5
s_add_u32 s44, s44, s46
s_add_u32 s44, s44, {WS_T2T}
v_mul_u32_u24 v6, 3072, v1
v_lshl_add_u32 v6, v2, 3, v6''')
    for c in range(4):
        a(f'v_cvt_pk_bf16_f32 v{32+2*c}, v{16+4*c}, v{17+4*c}\nv_cvt_pk_bf16_f32 v{33+2*c}, v{18+4*c}, v{19+4*c}')
        a(f'buffer_store_dwordx2 v[{32+2*c}:{33+2*c}], v6, s[32:35], s44 offen offset:{768*c}')
    a('P1_done:\ns_endpgm')

def k_pre2(a):
    a(head('pre2_kernel'))
    a('s_cmp_ge_u32 s2, 1248\ns_cbranch_scc1 P2_done')
    for s, n in ((20,'lat_hi'),(24,'lat_lo'),(32,'ws')): srd(a, s, n)
    lane_ids(a)
    a('s_waitcnt lgkmcnt(0)')
    for s, n in ((20,'lat_hi'),(24,'lat_lo'),(32,'ws')): srd_fin(a, s, n)
    a('''v_mul_u32_u24 v4, 768, v1
v_lshl_add_u32 v4, v2, 4, v4
v_mul_u32_u24 v6, 1536, v1
v_lshl_add_u32 v6, v2, 3, v6
s_cmp_ge_u32 s2, 96
s_cbranch_scc1 P2_w''')
    a(f'''s_lshr_b32 s40, s2, 1   ; jtile
s_and_b32 s41, s2, 1
s_mul_i32 s42, s40, 12288
s_add_u32 s42, s42, {WS_G}
s_mul_i32 s43, s41, 12288
s_add_u32 s43, s43, {WS_Q}
s_mul_i32 s44, s41, 24576
s_lshl_b32 s45, s40, 5
s_add_u32 s44, s44, s45
s_add_u32 s44, s44, {WS_A}
s_mov_b32 s46, {f2u(384**-0.5 * LOG2E)}''')
    load_direct(a, 32, 4, 's42', 32, 12)
    a('s_branch P2_go')
    a(f'''P2_w:
s_sub_u32 s40, s2, 96
s_mul_i32 s41, s40, 1366
s_lshr_b32 s41, s41, 16      ; ntile
s_mul_i32 s42, s41, 48
s_sub_u32 s42, s40, s42      ; jtile
s_cmp_ge_u32 s42, 24
s_cselect_b32 s20, s24, s20
s_cselect_b32 s21, s25, s21
s_cselect_b32 s45, 24, 0
s_sub_u32 s45, s42, s45
s_mul_i32 s45, s45, 12288
s_mul_i32 s43, s41, 12288
s_add_u32 s43, s43, {WS_T2T}
s_mul_i32 s44, s41, 24576
s_lshl_b32 s47, s42, 5
s_add_u32 s44, s44, s47
s_add_u32 s44, s44, {WS_WOVT}
s_mov_b32 s46, 1.0''')
    load_direct(a, 20, 4, 's45', 32, 12)
    a('P2_go:')
    load_direct(a, 32, 4, 's43', 80, 12)
    a('s_waitcnt vmcnt(0)')
    for s in range(12):
        a(f'v_mfma_f32_16x16x32_bf16 v[16:19], v[{32+4*s}:{35+4*s}], v[{80+4*s}:{83+4*s}], {"v[16:19]" if s else "0"}')
    a('s_nop 7\ns_nop 1')
    for r in range(4): a(f'v_mul_f32 v{16+r}, s46, v{16+r}')
    a('v_cvt_pk_bf16_f32 v20, v16, v17\nv_cvt_pk_bf16_f32 v21, v18, v19')
    a('buffer_store_dwordx2 v[20:21], v6, s[32:35], s44 offen')
    a('P2_done:\ns_endpgm')

NS = 5; NU = 18; SLOT = 30720
def main_loader(a, flags, mapping):
    for j in range(3):
        a(f'''v_add_u32 v3, {64*j}, v2
v_mul_u32_u24 v4, 1366, v3
v_lshrrev_b32 v4, 16, v4
v_mul_u32_u24 v5, 48, v4
v_sub_u32 v5, v3, v5
v_lshl_add_u32 v6, v1, 2, v4
v_and_b32 v6, 7, v6
v_lshlrev_b32 v6, 1, v6
v_xor_b32 v5, v5, v6
v_lshlrev_b32 v5, 4, v5
v_mul_u32_u24 v4, 768, v4
v_add_u32 v5, v5, v4
v_mul_u32_u24 v4, 3072, v1
v_add_u32 v5, v5, v4
v_subrev_u32 v{10+j}, {1024*j}, v5''')
    for j in range(2):
        a(f'''v_add_u32 v3, {64*j}, v2
v_mul_u32_u24 v4, 1366, v3
v_lshrrev_b32 v4, 16, v4
v_mul_u32_u24 v5, 48, v4
v_sub_u32 v5, v3, v5
v_lshl_add_u32 v6, v1, 1, v4
v_and_b32 v6, 7, v6
v_lshlrev_b32 v6, 1, v6
v_xor_b32 v5, v5, v6
v_lshlrev_b32 v5, 4, v5
v_mul_u32_u24 v4, 768, v4
v_add_u32 v5, v5, v4
v_mul_u32_u24 v4, 1536, v1
v_add_u32 v5, v5, v4
v_subrev_u32 v{13+j}, {1024*j}, v5''')
    a('s_mul_i32 s30, s3, 3072\ns_mul_i32 s31, s3, 1536')
    if mapping == 'contig': a(f's_mul_i32 s16, s2, {NU}'); step = 1
    elif mapping == 'inter': a('s_mov_b32 s16, s2'); step = 256
    elif mapping == 'xcd':
        a(f's_and_b32 s16, s2, 7\ns_mul_i32 s16, s16, {NU*32}\ns_lshr_b32 s17, s2, 3\ns_add_u32 s16, s16, s17'); step = 32
    def issue(i):
        slot = i % NS
        a(f'''s_add_u32 s17, s16, {i*step}
s_mul_i32 s18, s17, 2731
s_lshr_b32 s18, s18, 16
s_mul_i32 s19, s18, 24
s_sub_u32 s19, s17, s19
s_mul_i32 s22, s18, 589824
s_mul_i32 s23, s19, 12288
s_add_u32 s22, s22, s23
s_add_u32 s23, s22, 294912
s_mul_i32 s24, s17, 6144
s_add_u32 m0, s30, {slot*SLOT}
s_nop 0
buffer_load_dwordx4 v10, s[8:11], s22 offen {flags} lds
buffer_load_dwordx4 v11, s[8:11], s22 offen offset:1024 {flags} lds
buffer_load_dwordx4 v12, s[8:11], s22 offen offset:2048 {flags} lds
s_add_u32 m0, s30, {slot*SLOT+12288}
s_nop 0
buffer_load_dwordx4 v10, s[8:11], s23 offen {flags} lds
buffer_load_dwordx4 v11, s[8:11], s23 offen offset:1024 {flags} lds
buffer_load_dwordx4 v12, s[8:11], s23 offen offset:2048 {flags} lds
s_add_u32 m0, s31, {slot*SLOT+24576}
s_nop 0
buffer_load_dwordx4 v13, s[12:15], s24 offen {flags} lds
s_mov_b64 exec, 0xffffffff
buffer_load_dwordx4 v14, s[12:15], s24 offen offset:1024 {flags} lds
s_mov_b64 exec, -1''')
    for i in range(NS): issue(i)
    issued = NS
    for i in range(NU):
        a(f's_waitcnt vmcnt({8*(issued-1-i)})\ns_barrier')
        if i >= 1 and issued < NU:
            issue(issued); issued += 1
    a('s_endpgm')

R_A = 64
R_ACC = 160
R_NEGM = 4
R_SL = 8; R_S0 = 12; R_S1 = 16
R_L = 20; R_T = 21
R_B0 = 24
R_AD = 28
R_F = 32
THR = 8.0
def main_compute_unit(a, lbl):
    NF = 8
    ops = []
    def setaddr(base, shift):
        a(f'v_add_u32 v{R_AD}, s20, v{base}')
        for k in range(1, 4): a(f'v_xor_b32 v{R_AD+k}, {k << shift}, v{R_AD}')
    reads = []
    for s in range(12): reads.append(('lo', s))
    for s in range(12):
        reads.append(('h0', s)); reads.append(('h1', s))
    def rd(idx):
        kind, s = reads[idx]
        f = R_F + 4 * (idx % NF)
        if idx == 0: setaddr(R_B0 + 1, 6)
        if idx == 12: setaddr(R_B0 + 0, 6)
        imm = 256 * (s // 4) + (12288 if kind == 'h1' else 0)
        a(f'ds_read_b128 v[{f}:{f+3}], v{R_AD + s % 4} offset:{imm}')
    def mm(idx):
        kind, s = reads[idx]
        f = R_F + 4 * (idx % NF)
        if kind == 'lo':
            D, C, B = R_SL, (R_NEGM if s == 0 else R_SL), R_A + 48 + 4 * s
        else:
            D = R_S0 if kind == 'h0' else R_S1
            C = R_SL if s == 0 else D
            B = R_A + 4 * s
        if idx == 12: a('s_nop 5')
        a(f'v_mfma_f32_16x16x32_bf16 v[{D}:{D+3}], v[{f}:{f+3}], v[{B}:{B+3}], v[{C}:{C+3}]')
    PRE = NF - 1
    for i in range(PRE): rd(i)
    for i in range(36):
        nxt = i + PRE
        if nxt < 36:
            rd(nxt); a(f's_waitcnt lgkmcnt({PRE})')
        else:
            a(f's_waitcnt lgkmcnt({35 - i})')
        mm(i)
    pv = [('h', t) for t in range(12)] + [('l', t) for t in range(12)]
    def prd(idx):
        kind, t = pv[idx]
        f = R_F + 4 * ((idx + 4) % NF)
        if idx == 0: setaddr(R_B0 + 2, 5)
        if idx == 12: setaddr(R_B0 + 3, 5)
        imm = 256 * (t // 4)
        if kind == 'h':
            a(f'ds_read_b64_tr_b16 v[{f}:{f+1}], v{R_AD + t % 4} offset:{imm}')
            a(f'ds_read_b64_tr_b16 v[{f+2}:{f+3}], v{R_AD + t % 4} offset:{imm + 12288}')
            return 2
        a(f'ds_read_b64_tr_b16 v[{f}:{f+1}], v{R_AD + t % 4} offset:{imm}')
        return 1
    PPRE = 6
    cnt = [2 if k == 'h' else 1 for k, _ in pv]
    for i in range(PPRE): prd(i)
    a(f'''v_max3_f32 v{R_T}, v{R_S0}, v{R_S0+1}, v{R_S0+2}
v_max3_f32 v{R_T}, v{R_T}, v{R_S0+3}, v{R_S1}
v_max3_f32 v{R_T}, v{R_T}, v{R_S1+1}, v{R_S1+2}
v_max_f32 v{R_T}, v{R_T}, v{R_S1+3}
v_cmp_lt_f32 vcc, s21, v{R_T}
s_cbranch_vccnz {lbl}_rare
{lbl}_back:''')
    for r in range(4): a(f'v_exp_f32 v{R_S0+r}, v{R_S0+r}')
    for r in range(4): a(f'v_exp_f32 v{R_S1+r}, v{R_S1+r}')
    for r in range(4): a(f'v_add_f32 v{R_SL+r}, v{R_S0+r}, v{R_S1+r}')
    a(f'''v_cvt_pk_bf16_f32 v{R_S0}, v{R_S0}, v{R_S0+1}
v_cvt_pk_bf16_f32 v{R_S0+1}, v{R_S0+2}, v{R_S0+3}
v_cvt_pk_bf16_f32 v{R_S0+2}, v{R_S1}, v{R_S1+1}
v_cvt_pk_bf16_f32 v{R_S0+3}, v{R_S1+2}, v{R_S1+3}
v_cvt_pk_bf16_f32 v{R_S1}, v{R_SL}, v{R_SL+1}
v_cvt_pk_bf16_f32 v{R_S1+1}, v{R_SL+2}, v{R_SL+3}
v_add_f32 v{R_SL}, v{R_SL}, v{R_SL+1}
v_add_f32 v{R_SL+2}, v{R_SL+2}, v{R_SL+3}
v_add_f32 v{R_L}, v{R_L}, v{R_SL}
v_add_f32 v{R_L}, v{R_L}, v{R_SL+2}''')
    for i in range(24):
        nxt = i + PPRE
        if nxt < 24: prd(nxt)
        out = sum(cnt[i+1:min(nxt, 23)+1])
        a(f's_waitcnt lgkmcnt({out})')
        kind, t = pv[i]
        f = R_F + 4 * ((i + 4) % NF)
        D = R_ACC + 4 * i
        if kind == 'h': a(f'v_mfma_f32_16x16x32_bf16 v[{D}:{D+3}], v[{f}:{f+3}], v[{R_S0}:{R_S0+3}], v[{D}:{D+3}]')
        else:           a(f'v_mfma_f32_16x16x16_bf16 v[{D}:{D+3}], v[{f}:{f+1}], v[{R_S1}:{R_S1+1}], v[{D}:{D+3}]')
def main_rare(a, lbl):
    a(f'{lbl}_rare:')
    allreduce_g(a, R_T, R_T + 1, 'v_max_f32')
    a(f'''v_max_f32 v{R_T}, s22, v{R_T}
s_mov_b32 s21, {f2u(THR)}
s_mov_b32 s22, 0''')
    for r in range(4):
        a(f'v_sub_f32 v{R_S0+r}, v{R_S0+r}, v{R_T}\nv_sub_f32 v{R_S1+r}, v{R_S1+r}, v{R_T}\nv_sub_f32 v{R_NEGM+r}, v{R_NEGM+r}, v{R_T}')
    a(f'v_max_f32 v{R_T}, 0, v{R_T}\nv_sub_f32 v{R_T}, 0, v{R_T}\nv_exp_f32 v{R_T}, v{R_T}\ns_nop 0')
    a(f'v_mul_f32 v{R_L}, v{R_L}, v{R_T}')
    for r in range(96): a(f'v_mul_f32 v{R_ACC+r}, v{R_ACC+r}, v{R_T}')
    a(f's_branch {lbl}_back')

def main_addr_setup(a):
    a(f'''v_and_b32 v3, 7, v1
v_lshlrev_b32 v3, 1, v3
v_xor_b32 v3, v3, v2
v_lshlrev_b32 v3, 4, v3
v_mul_u32_u24 v{R_B0}, 768, v1
v_add_u32 v{R_B0}, v{R_B0}, v3
v_lshrrev_b32 v21, 1, v1                   ; p = i/2
v_lshlrev_b32 v3, 1, v21
v_xor_b32 v3, v3, v2
v_lshlrev_b32 v3, 4, v3
v_mul_u32_u24 v{R_B0+1}, 768, v21
v_add_u32 v{R_B0+1}, v{R_B0+1}, v3
v_add_u32 v{R_B0+1}, 24576, v{R_B0+1}     ; qk lo
v_lshrrev_b32 v21, 2, v1                   ; r
v_and_b32 v22, 3, v1                       ; c
v_lshl_add_u32 v23, v2, 2, v21             ; p = 4g + r
v_and_b32 v3, 7, v23
v_lshlrev_b32 v3, 1, v3
v_lshrrev_b32 v8, 1, v22
v_xor_b32 v3, v3, v8
s_lshl_b32 s6, s5, 3
v_xor_b32 v3, s6, v3
v_lshlrev_b32 v3, 4, v3
v_and_b32 v9, 1, v22
v_lshl_add_u32 v3, v9, 3, v3
v_mul_u32_u24 v{R_B0+2}, 768, v23
v_add_u32 v{R_B0+2}, v{R_B0+2}, v3
v_lshrrev_b32 v21, 1, v21
v_lshl_add_u32 v23, v2, 1, v21             ; p = 2g + r/2
v_lshlrev_b32 v3, 1, v23
v_xor_b32 v3, v3, v8
v_xor_b32 v3, s6, v3
v_lshlrev_b32 v3, 4, v3
v_lshl_add_u32 v3, v9, 3, v3
v_mul_u32_u24 v{R_B0+3}, 768, v23
v_add_u32 v{R_B0+3}, v{R_B0+3}, v3
v_add_u32 v{R_B0+3}, 24576, v{R_B0+3}     ; pv lo''')

def k_main(a, flags, mapping, stamps):
    a(head('main_kernel'))
    a('s_cmp_ge_u32 s2, 256\ns_cbranch_scc1 M_done')
    if stamps: a('s_memrealtime s[40:41]')
    for s, n in ((8,'hi'),(12,'lo'),(32,'ws')): srd(a, s, n)
    a('v_lshrrev_b32 v1, 6, v0\ns_nop 0\nv_readfirstlane_b32 s3, v1\ns_waitcnt lgkmcnt(0)')
    for s, n in ((8,'hi'),(12,'lo'),(32,'ws')): srd_fin(a, s, n)
    a('s_cmp_lt_u32 s3, 4\ns_cbranch_scc1 M_compute')
    a('s_sub_u32 s3, s3, 4\nv_subrev_u32 v1, 4, v1\nv_and_b32 v2, 63, v0')
    main_loader(a, flags, mapping)
    a('M_compute:')
    lane_ids(a)
    a('s_and_b32 s4, s3, 1\ns_lshr_b32 s5, s3, 1')
    a(f'''v_mul_u32_u24 v3, 1536, v1
v_lshl_add_u32 v3, v2, 4, v3
s_mul_i32 s6, s4, 24576
s_add_u32 s6, s6, {WS_A}''')
    load_direct(a, 32, 3, 's6', R_A, 24)
    main_addr_setup(a)
    for r in range(96): a(f'v_mov_b32 v{R_ACC+r}, 0')
    for r in range(4): a(f'v_mov_b32 v{R_NEGM+r}, 0')
    a(f'''v_mov_b32 v{R_L}, 0
s_mov_b32 s21, 0xff800000
s_mov_b32 s22, 0xff800000
s_mov_b32 s20, 0
s_mov_b32 s23, 0
s_waitcnt vmcnt(0)
M_loop:
s_barrier''')
    main_compute_unit(a, 'M')
    a(f'''s_add_u32 s20, s20, {SLOT}
s_cmp_eq_u32 s20, {NS*SLOT}
s_cselect_b32 s20, 0, s20
s_add_u32 s23, s23, 1
s_cmp_lt_u32 s23, {NU}
s_cbranch_scc1 M_loop''')
    if stamps: a('s_memrealtime s[42:43]')
    allreduce_g(a, R_L, R_T, 'v_add_f32')
    a(f'''s_nop 7
v_lshl_add_u32 v3, v1, 2, v2
v_lshlrev_b32 v3, 4, v3
s_mul_i32 s6, s2, 49152
s_mul_i32 s7, s3, 12288
s_add_u32 s6, s6, s7
s_add_u32 s6, s6, {WS_PART}''')
    for s in range(12):
        f = R_F + 4 * (s % 8)
        for k in range(4): a(f'v_cvt_pk_bf16_f32 v{f+k}, v{R_ACC+8*s+2*k}, v{R_ACC+8*s+2*k+1}')
        if s in (4, 8): a('s_add_u32 s6, s6, 4096')
        a(f'buffer_store_dwordx4 v[{f}:{f+3}], v3, s[32:35], s6 offen offset:{1024*(s%4)}')
    a(f'''v_sub_f32 v{R_T+1}, 0, v{R_NEGM}
v_mov_b32 v{R_T+2}, v{R_L}
v_lshlrev_b32 v3, 3, v1
s_lshl_b32 s6, s2, 8
s_lshl_b32 s7, s4, 7
s_add_u32 s6, s6, s7
s_add_u32 s6, s6, {WS_ML}
s_cmp_lg_u32 s5, 0
s_cbranch_scc1 M_noml
s_mov_b64 exec, 0xffff
buffer_store_dwordx2 v[{R_T+1}:{R_T+2}], v3, s[32:35], s6 offen
s_mov_b64 exec, -1
M_noml:''')
    if stamps:
        a(f'''s_waitcnt vmcnt(0)
s_memrealtime s[44:45]
s_waitcnt lgkmcnt(0)
s_cmp_lg_u32 s3, 0
s_cbranch_scc1 M_done
v_mov_b32 v20, s40
v_mov_b32 v21, s41
v_mov_b32 v22, s42
v_mov_b32 v23, s43
v_mov_b32 v24, s44
v_mov_b32 v25, s45
v_mov_b32 v26, s44
v_mov_b32 v27, s45
s_lshl_b32 s28, s2, 5
s_add_u32 s28, s28, {WS_STAMP}
v_mov_b32 v28, s28
s_mov_b64 exec, 1
buffer_store_dwordx4 v[20:23], v28, s[32:35], 0 offen
buffer_store_dwordx4 v[24:27], v28, s[32:35], 0 offen offset:16''')
    a('M_done:\ns_endpgm')
    main_rare(a, 'M')

def k_red(a):
    a(head('red_kernel'))
    a('s_cmp_ge_u32 s2, 192\ns_cbranch_scc1 R_done')
    srd(a, 32, 'ws')
    a('v_and_b32 v1, 15, v0\nv_lshrrev_b32 v2, 4, v0\ns_waitcnt lgkmcnt(0)')
    srd_fin(a, 32, 'ws')
    a(f'''s_lshr_b32 s4, s2, 2
s_mul_i32 s5, s4, 5462
s_lshr_b32 s5, s5, 16          ; wave
s_mul_i32 s6, s5, 12
s_sub_u32 s6, s4, s6           ; s
s_and_b32 s7, s2, 3
s_lshl_b32 s7, s7, 2           ; q16 base
s_and_b32 s8, s5, 1
s_lshl_b32 s8, s8, 4
s_add_u32 s7, s7, s8           ; q base
v_lshrrev_b32 v3, 2, v1
v_add_u32 v3, s7, v3           ; q
v_lshlrev_b32 v4, 3, v3
v_lshl_add_u32 v4, v2, 12, v4
s_mov_b32 s9, {WS_ML}
s_mov_b32 s10, 786432
v_mul_lo_u32 v5, v2, s10       ; sg*16*49152
v_lshl_add_u32 v5, v1, 4, v5
s_lshl_b32 s11, s2, 8
s_add_u32 s11, s11, {WS_PART}''')
    for k in range(16):
        a(f'buffer_load_dwordx2 v[{32+2*k}:{33+2*k}], v4, s[32:35], s9 offen offset:{256*k}')
    for k in range(16):
        a(f'buffer_load_dwordx4 v[{64+4*k}:{67+4*k}], v5, s[32:35], s11 offen\ns_add_u32 s11, s11, 49152')
    a('s_waitcnt vmcnt(0)\nv_mov_b32 v8, v32')
    for k in range(1, 16): a(f'v_max_f32 v8, v8, v{32+2*k}')
    for r in range(9, 18): a(f'v_mov_b32 v{r}, 0')
    for k in range(16):
        a(f'v_sub_f32 v6, v{32+2*k}, v8\nv_exp_f32 v6, v6\ns_nop 0\nv_fmac_f32 v9, v6, v{33+2*k}')
        for e in range(4):
            a(f'v_lshlrev_b32 v7, 16, v{64+4*k+e}\nv_fmac_f32 v{10+2*e}, v6, v7\nv_and_b32 v7, 0xffff0000, v{64+4*k+e}\nv_fmac_f32 v{11+2*e}, v6, v7')
    a('''v_mul_u32_u24 v6, 48, v0
ds_write_b128 v6, v[8:11]
ds_write_b128 v6, v[12:15] offset:16
ds_write_b64 v6, v[16:17] offset:32
s_waitcnt lgkmcnt(0)
s_barrier
v_cmp_gt_u32 vcc, 16, v0
s_and_saveexec_b64 s[12:13], vcc
s_cbranch_execz R_done''')
    for k in range(16):
        a(f'ds_read_b128 v[{32+12*k}:{35+12*k}], v6 offset:{768*k}\nds_read_b128 v[{36+12*k}:{39+12*k}], v6 offset:{768*k+16}\nds_read_b64 v[{40+12*k}:{41+12*k}], v6 offset:{768*k+32}\ns_waitcnt lgkmcnt(0)')
    a('v_mov_b32 v8, v32')
    for k in range(1, 16): a(f'v_max_f32 v8, v8, v{32+12*k}')
    for r in range(9, 18): a(f'v_mov_b32 v{r}, 0')
    for k in range(16):
        a(f'v_sub_f32 v6, v{32+12*k}, v8\nv_exp_f32 v6, v6\ns_nop 0')
        for e in range(9): a(f'v_fmac_f32 v{9+e}, v6, v{33+12*k+e}')
    a('v_rcp_f32 v9, v9\ns_nop 0')
    for e in range(8): a(f'v_mul_f32 v{10+e}, v{10+e}, v9')
    for e in range(4): a(f'v_cvt_pk_bf16_f32 v{20+e}, v{10+2*e}, v{11+2*e}')
    a(f'''s_lshl_b32 s14, s6, 1       ; tau
s_cmp_ge_u32 s14, 12
s_cselect_b32 s15, 384, 0
s_cselect_b32 s16, 12, 0
s_sub_u32 s14, s14, s16
s_lshr_b32 s16, s14, 2
s_lshl_b32 s16, s16, 7
s_add_u32 s15, s15, s16
s_and_b32 s16, s14, 3
s_lshl_b32 s16, s16, 4
s_add_u32 s15, s15, s16
s_lshr_b32 s16, s5, 1
s_lshl_b32 s16, s16, 6
s_add_u32 s15, s15, s16
s_lshl_b32 s15, s15, 1
s_add_u32 s15, s15, {WS_OC}
v_mul_u32_u24 v6, 1536, v3
v_and_b32 v7, 3, v1
v_lshl_add_u32 v6, v7, 3, v6
buffer_store_dwordx2 v[20:21], v6, s[32:35], s15 offen
buffer_store_dwordx2 v[22:23], v6, s[32:35], s15 offen offset:32
R_done:
s_endpgm''')

def k_h(a):
    a(head('h_kernel'))
    a('s_cmp_ge_u32 s2, 48\ns_cbranch_scc1 H_done')
    srd(a, 8, 'q'); srd(a, 32, 'ws'); lane_ids(a)
    a('s_waitcnt lgkmcnt(0)'); srd_fin(a, 8, 'q'); srd_fin(a, 32, 'ws')
    a(f'''v_mul_u32_u24 v4, 1536, v1
v_lshl_add_u32 v4, v2, 4, v4
s_lshr_b32 s40, s2, 1
s_and_b32 s41, s2, 1
s_mul_i32 s42, s40, 24576
s_add_u32 s42, s42, {WS_WOVT}
s_mul_i32 s43, s41, 24576
s_add_u32 s43, s43, {WS_OC}
v_mul_u32_u24 v5, 768, v1
v_lshl_add_u32 v5, v2, 3, v5
s_mul_i32 s44, s41, 12288
s_lshl_b32 s45, s40, 5
s_add_u32 s44, s44, s45
buffer_load_dwordx2 v[6:7], v5, s[8:11], s44 offen''')
    load_direct(a, 32, 4, 's42', 32, 24)
    load_direct(a, 32, 4, 's43', 128, 24)
    a('s_waitcnt vmcnt(0)\nv_lshlrev_b32 v16, 16, v6\nv_and_b32 v17, 0xffff0000, v6\nv_lshlrev_b32 v18, 16, v7\nv_and_b32 v19, 0xffff0000, v7\ns_nop 1')
    for s in range(24):
        a(f'v_mfma_f32_16x16x32_bf16 v[16:19], v[{32+4*s}:{35+4*s}], v[{128+4*s}:{131+4*s}], v[16:19]')
    a(f'''s_nop 7
s_nop 1
s_lshl_b32 s44, s44, 1
s_add_u32 s44, s44, {WS_H}
buffer_store_dwordx4 v[16:19], v4, s[32:35], s44 offen
H_done:
s_endpgm''')

def k_mlp1(a):
    a(head('mlp1_kernel'))
    a('s_cmp_ge_u32 s2, 48\ns_cbranch_scc1 G_done')
    srd(a, 8, 'w1'); srd(a, 32, 'ws'); lane_ids(a)
    a('s_waitcnt lgkmcnt(0)'); srd_fin(a, 8, 'w1'); srd_fin(a, 32, 'ws')
    a(f'''s_lshr_b32 s40, s2, 1
s_and_b32 s41, s2, 1
v_mul_u32_u24 v4, 1536, v1
v_lshl_add_u32 v4, v2, 5, v4
s_mul_i32 s42, s41, 24576
s_add_u32 s42, s42, {WS_H}''')
    for s in range(12):
        a(f'buffer_load_dwordx4 v[{32+8*s}:{35+8*s}], v4, s[32:35], s42 offen offset:{128*s}')
        a(f'buffer_load_dwordx4 v[{36+8*s}:{39+8*s}], v4, s[32:35], s42 offen offset:{128*s+16}')
    a('s_waitcnt vmcnt(0)')
    layernorm_f32(a, 32, 96, 128, 8)
    a('v_mul_u32_u24 v3, 24576, v2\nv_lshl_add_u32 v3, v1, 3, v3\ns_lshl_b32 s43, s40, 7')
    job_trans(a, 8, 3072, 43, lambda s: 128 + 4*s, 384, True)
    c1 = -2 * 0.7978845608028654 * LOG2E; c2 = c1 * 0.044715
    a(f's_mov_b32 s46, {f2u(c2)}\nv_mov_b32 v8, {f2u(c1)}')
    for r in range(16):
        x = 16 + r
        a(f'v_mul_f32 v9, v{x}, v{x}\nv_fma_f32 v9, v9, s46, v8\nv_mul_f32 v9, v9, v{x}\nv_exp_f32 v9, v9\ns_nop 0\nv_add_f32 v9, 1.0, v9\nv_rcp_f32 v9, v9\ns_nop 0\nv_mul_f32 v{x}, v{x}, v9')
    for r in range(4):
        a(f'v_cvt_pk_bf16_f32 v{32+2*r}, v{16+r}, v{20+r}\nv_cvt_pk_bf16_f32 v{33+2*r}, v{24+r}, v{28+r}')
    a(f'''v_mul_u32_u24 v6, 3072, v1
v_lshl_add_u32 v6, v2, 5, v6
s_mul_i32 s44, s41, 49152
s_add_u32 s44, s44, s43
s_add_u32 s44, s44, {WS_GM}
buffer_store_dwordx4 v[32:35], v6, s[32:35], s44 offen
buffer_store_dwordx4 v[36:39], v6, s[32:35], s44 offen offset:16
G_done:
s_endpgm''')

def k_mlp2(a):
    a(head('mlp2_kernel'))
    a('s_cmp_ge_u32 s2, 12\ns_cbranch_scc1 O_done')
    srd(a, 8, 'w2'); srd(a, 32, 'ws'); srd(a, 12, 'out'); lane_ids(a)
    a('s_waitcnt lgkmcnt(0)'); srd_fin(a, 8, 'w2'); srd_fin(a, 32, 'ws'); srd_fin(a, 12, 'out')
    a(f'''s_lshr_b32 s40, s2, 1
s_and_b32 s41, s2, 1
v_mul_u32_u24 v4, 3072, v1
v_lshl_add_u32 v4, v2, 4, v4
s_mul_i32 s42, s41, 49152
s_add_u32 s42, s42, {WS_GM}
v_mul_u32_u24 v3, 6144, v2
v_lshl_add_u32 v3, v1, 3, v3
s_lshl_b32 s43, s40, 7
v_mul_u32_u24 v5, 1536, v1
v_lshl_add_u32 v5, v2, 6, v5
s_mul_i32 s47, s41, 24576
s_lshl_b32 s48, s40, 8
s_add_u32 s47, s47, s48
s_add_u32 s47, s47, {WS_H}''')
    for r in range(4): a(f'buffer_load_dwordx4 v[{180+4*r}:{183+4*r}], v5, s[32:35], s47 offen offset:{16*r}')
    for kb in range(4):
        load_direct(a, 32, 4, 's42', 128, 12, koff=768*kb)
        job_trans(a, 8, 768, 43, lambda s: 128 + 4*s, 384, True, kbase=384*kb)
    for r in range(4):
        for c in range(4): a(f'v_add_f32 v{16+4*c+r}, v{16+4*c+r}, v{180+4*r+c}')
    for r in range(4):
        a(f'v_cvt_pk_bf16_f32 v{32+2*r}, v{16+r}, v{20+r}\nv_cvt_pk_bf16_f32 v{33+2*r}, v{24+r}, v{28+r}')
    a(f'''v_mul_u32_u24 v6, 768, v1
v_lshl_add_u32 v6, v2, 5, v6
s_mul_i32 s44, s41, 12288
s_add_u32 s44, s44, s43
buffer_store_dwordx4 v[32:35], v6, s[12:15], s44 offen
buffer_store_dwordx4 v[36:39], v6, s[12:15], s44 offen offset:16
O_done:
s_endpgm''')

def gen(fn, flags='nt', mapping='inter', stamps=False, extra_launch=0):
    a = Asm()
    a(f'''; @launch kernel=pre1_kernel grid=(444,1,1) block=(64,1,1) lds=0
; @launch kernel=pre2_kernel grid=(1248,1,1) block=(64,1,1) lds=0
; @launch kernel=main_kernel grid=(256,1,1) block=(512,1,1) lds={NS*SLOT}
; @launch kernel=red_kernel grid=(192,1,1) block=(256,1,1) lds=12288
; @launch kernel=h_kernel grid=(48,1,1) block=(64,1,1) lds=0
; @launch kernel=mlp1_kernel grid=(48,1,1) block=(64,1,1) lds=0
; @launch kernel=mlp2_kernel grid=(12,1,1) block=(64,1,1) lds=0''')
    for i in range(extra_launch): a('; @launch kernel=h_kernel grid=(48,1,1) block=(64,1,1) lds=0')
    a('.amdgcn_target "amdgcn-amd-amdhsa--gfx950"\n.text')
    k_pre1(a); k_pre2(a); k_main(a, flags, mapping, stamps); k_red(a); k_h(a); k_mlp1(a); k_mlp2(a)
    a('.section .rodata,"a"')
    for k in ('pre1', 'pre2', 'main', 'red', 'h', 'mlp1', 'mlp2'):
        a('.p2align 6'); a(kd(k + '_kernel', 256, 102))
    open(fn, 'w').write(a.text())
if __name__ == '__main__':
    gen('base_nt.s', 'nt', 'inter')
    gen('base_nt_st.s', 'nt', 'inter', stamps=True)
    gen('base_def.s', '', 'inter')
    gen('base_nt_contig.s', 'nt', 'contig')
    gen('base_def_contig.s', '', 'contig')
    gen('base_nt_x4.s', 'nt', 'inter', extra_launch=4)
```

```python
import sys
from asmlib import *
def gen(fn, NS=5, mapping='contig', flags='', NU=18, NWG=256, swz=True):
    a = Asm()
    lds = NS * 30720
    a(f'; @launch grid=({NWG},1,1) block=(256,1,1) lds={lds}')
    a('.amdgcn_target "amdgcn-amd-amdhsa--gfx950"\n.text')
    a(head(NAME + '_kernel'))
    a(f'''
s_cmp_ge_u32 s2, {NWG}
s_cbranch_scc1 L_done
s_memrealtime s[40:41]
s_load_dwordx4 s[4:7], s[0:1], 8
s_load_dwordx2 s[20:21], s[0:1], 96
v_lshrrev_b32 v1, 6, v0
v_and_b32 v2, 63, v0
s_nop 0
v_readfirstlane_b32 s3, v1
''')
    for j in range(3):
        a(f'''
v_add_u32 v3, {64*j}, v2
v_mul_u32_u24 v4, 1366, v3
v_lshrrev_b32 v4, 16, v4          ; row = u/48
v_mul_u32_u24 v5, 48, v4
v_sub_u32 v5, v3, v5              ; cu
v_lshl_add_u32 v6, v1, 2, v4      ; p = 4w+row
v_and_b32 v6, 7, v6
v_lshlrev_b32 v6, 1, v6
{'v_xor_b32 v5, v5, v6' if swz else ''}
v_lshlrev_b32 v5, 4, v5
v_mul_u32_u24 v4, 768, v4
v_add_u32 v5, v5, v4
v_mul_u32_u24 v4, 3072, v1
v_add_u32 v5, v5, v4
v_subrev_u32 v{10+j}, {1024*j}, v5
''')
    for j in range(2):
        a(f'''
v_add_u32 v3, {64*j}, v2
v_mul_u32_u24 v4, 1366, v3
v_lshrrev_b32 v4, 16, v4          ; row = u/48
v_mul_u32_u24 v5, 48, v4
v_sub_u32 v5, v3, v5              ; cu
v_lshl_add_u32 v6, v1, 1, v4      ; p = 2w+row
v_and_b32 v6, 7, v6
v_lshlrev_b32 v6, 1, v6
{'v_xor_b32 v5, v5, v6' if swz else ''}
v_lshlrev_b32 v5, 4, v5
v_mul_u32_u24 v4, 768, v4
v_add_u32 v5, v5, v4
v_mul_u32_u24 v4, 1536, v1
v_add_u32 v5, v5, v4
v_subrev_u32 v{13+j}, {1024*j}, v5
''')
    a('''
s_waitcnt lgkmcnt(0)
s_mov_b32 s8, s4
s_and_b32 s9, s5, 0xffff
s_mov_b32 s10, 113246208
s_mov_b32 s11, 0x20000
s_mov_b32 s12, s6
s_and_b32 s13, s7, 0xffff
s_mov_b32 s14, 28311552
s_mov_b32 s15, 0x20000
s_mul_i32 s30, s3, 3072
s_mul_i32 s31, s3, 1536
''')
    if mapping == 'contig':
        a(f's_mul_i32 s16, s2, {NU}')
        step = 1
    elif mapping == 'inter':
        a('s_mov_b32 s16, s2'); step = NWG
    elif mapping == 'xcd':
        a(f's_and_b32 s16, s2, 7\ns_mul_i32 s16, s16, {NU*NWG//8}\ns_lshr_b32 s17, s2, 3\ns_add_u32 s16, s16, s17'); step = NWG//8
    def issue(i):
        slot = i % NS
        a(f'''
s_add_u32 s17, s16, {i*step}        ; unit
s_mul_i32 s18, s17, 2731
s_lshr_b32 s18, s18, 16              ; r
s_mul_i32 s19, s18, 24
s_sub_u32 s19, s17, s19              ; seg
s_mul_i32 s22, s18, 589824
s_mul_i32 s23, s19, 12288
s_add_u32 s22, s22, s23
s_add_u32 s23, s22, 294912
s_mul_i32 s24, s17, 6144
s_add_u32 m0, s30, {slot*30720}
s_nop 0
buffer_load_dwordx4 v10, s[8:11], s22 offen {flags} lds
buffer_load_dwordx4 v11, s[8:11], s22 offen offset:1024 {flags} lds
buffer_load_dwordx4 v12, s[8:11], s22 offen offset:2048 {flags} lds
s_add_u32 m0, s30, {slot*30720+12288}
s_nop 0
buffer_load_dwordx4 v10, s[8:11], s23 offen {flags} lds
buffer_load_dwordx4 v11, s[8:11], s23 offen offset:1024 {flags} lds
buffer_load_dwordx4 v12, s[8:11], s23 offen offset:2048 {flags} lds
s_add_u32 m0, s31, {slot*30720+24576}
s_nop 0
buffer_load_dwordx4 v13, s[12:15], s24 offen {flags} lds
s_mov_b64 exec, 0xffffffff
buffer_load_dwordx4 v14, s[12:15], s24 offen offset:1024 {flags} lds
s_mov_b64 exec, -1
''')
    for i in range(NS): issue(i)
    issued = NS
    for i in range(NU):
        newer = issued - 1 - i
        a(f's_waitcnt vmcnt({8*newer})\ns_barrier')
        if i == 0: a('s_memrealtime s[42:43]')
        if i == NU//2: a('s_memrealtime s[44:45]')
        if i >= 1 and issued < NU:
            issue(issued); issued += 1
    a('''
s_memrealtime s[46:47]
s_waitcnt lgkmcnt(0)
s_cmp_lg_u32 s3, 0
s_cbranch_scc1 L_done
s_mov_b32 s24, s20
s_and_b32 s25, s21, 0xffff
s_mov_b32 s26, 0x100000
s_mov_b32 s27, 0x20000
v_mov_b32 v20, s40
v_mov_b32 v21, s41
v_mov_b32 v22, s42
v_mov_b32 v23, s43
v_mov_b32 v24, s44
v_mov_b32 v25, s45
v_mov_b32 v26, s46
v_mov_b32 v27, s47
s_lshl_b32 s28, s2, 5
v_mov_b32 v28, s28
s_mov_b64 exec, 1
buffer_store_dwordx4 v[20:23], v28, s[24:27], 0 offen
buffer_store_dwordx4 v[24:27], v28, s[24:27], 0 offen offset:16
s_waitcnt vmcnt(0)
L_done:
s_endpgm
.section .rodata,"a"
.p2align 6''')
    a(kd(NAME + '_kernel', 64, 64))
    open(fn, 'w').write(a.text())
if __name__ == '__main__':
    gen('st_contig.s', mapping='contig')
    gen('st_contig_nt.s', mapping='contig', flags='nt')
    gen('st_inter.s', mapping='inter')
    gen('st_inter_nt.s', mapping='inter', flags='nt')
    gen('st_xcd_nt.s', mapping='xcd', flags='nt')
    gen('st_inter_nt3.s', mapping='inter', flags='nt', NS=3)
    gen('st_inter_nt4.s', mapping='inter', flags='nt', NS=4)
```

```python
import re, sys
from asmlib import *
import gen_stream
base = open('base_nt.s').read()
def combine(fn, exp_s, lds, grid=256, block=256):
    t = open(exp_s).read()
    body = t.split('.text\n', 1)[1]
    code, ro = body.split('.section .rodata,"a"')
    code = code.replace(NAME + '_kernel', 'exp_kernel').replace('L_done', 'X_done')
    ro = ro.replace(NAME + '_kernel', 'exp_kernel')
    out = f'; @launch kernel=exp_kernel grid=({grid},1,1) block=({block},1,1) lds={lds}\n' + base
    out = out.replace('.section .rodata,"a"', code + '.section .rodata,"a"' + ro)
    open(fn, 'w').write(out)
if __name__ == '__main__':
    gen_stream.gen('e.s', mapping='inter', flags='nt'); combine('h_inter_nt.s', 'e.s', 5*30720)
    gen_stream.gen('e.s', mapping='inter', flags=''); combine('h_inter_def.s', 'e.s', 5*30720)
    gen_stream.gen('e.s', mapping='xcd', flags='nt'); combine('h_xcd_nt.s', 'e.s', 5*30720)
    gen_stream.gen('e.s', mapping='contig', flags='nt'); combine('h_contig_nt.s', 'e.s', 5*30720)
    gen_stream.gen('e.s', mapping='inter', flags='nt', NU=1, NS=1); combine('h_tiny.s', 'e.s', 5*30720)
    gen_stream.gen('e.s', mapping='inter', flags='sc1'); combine('h_inter_sc1.s', 'e.s', 5*30720)
```

```python
from asmlib import *
from gen_base import f2u, allreduce_g
NEGM = 0; SL = 4; S0 = 8; S1 = 12; X = 16; PLO = 24; T = 26; L = 28; CA = 29; WA = 30; XW = 31; XR = 32
BQH = 33; BQL = 34; BPH = 35; BPL = 36; XT = 37; LF = 40; RING = 64; RA = 112; ACC = 160
THR = 24.0
class Q:
    def __init__(s, a, init=()): s.a = a; s.q = list(init)
    def op(s, text, tag):
        if len(s.q) >= 15: s.wait_n(10)
        s.a(text); s.q.append(tag)
    def wait_n(s, n):
        if len(s.q) > n: s.a(f's_waitcnt lgkmcnt({n})'); s.q = s.q[len(s.q) - n:] if n else []
    def need(s, *tags):
        idx = max([i for i, t in enumerate(s.q) if t in tags], default=-1)
        if idx >= 0: s.wait_n(len(s.q) - 1 - idx)
qk = [('lo', s) for s in range(6)]
for s in range(6): qk += [('h0', s), ('h1', s)]
def quad(j): return RING + 4 * (j % 12)
def rd_qk(q, j):
    kind, s = qk[j]; f = quad(j)
    if kind == 'lo': ad = BQL if s % 2 == 0 else XT
    else: ad = BQH if s % 2 == 0 else XT + 1
    imm = 256 * (s // 2) + (12288 if kind == 'h1' else 0)
    q.op(f'ds_read_b128 v[{f}:{f+3}], v{ad} offset:{imm}', f'q{j}')
def mm_qk(a, j):
    kind, s = qk[j]; f = quad(j)
    if kind == 'lo': D, C, B = SL, (NEGM if s == 0 else SL), RA + 24 + 4 * s
    else:
        D = S0 if kind == 'h0' else S1
        C = SL if s == 0 else D; B = RA + 4 * s
    a(f'v_mfma_f32_16x16x32_bf16 v[{D}:{D+3}], v[{f}:{f+3}], v[{B}:{B+3}], v[{C}:{C+3}]')
def pv_ad(base, t): return base if t % 4 == 0 else XT + t % 4 - 1
def rd_h(q, t):
    f = quad(t); ad = pv_ad(BPH, t); imm = 256 * (t // 4)
    q.op(f'ds_read_b64_tr_b16 v[{f}:{f+1}], v{ad} offset:{imm}', f'h{t}a')
    q.op(f'ds_read_b64_tr_b16 v[{f+2}:{f+3}], v{ad} offset:{imm+12288}', f'h{t}')
def rd_l(q, t):
    f = LF + 2 * t
    q.op(f'ds_read_b64_tr_b16 v[{f}:{f+1}], v{pv_ad(BPL, t)} offset:{256*(t//4)}', f'l{t}')
def mm_h(a, t):
    f = quad(t); D = ACC + 4 * t
    a(f'v_mfma_f32_16x16x32_bf16 v[{D}:{D+3}], v[{f}:{f+3}], v[{SL}:{SL+3}], v[{D}:{D+3}]')
def mm_l(a, t):
    f = LF + 2 * t; D = ACC + 48 + 4 * t
    a(f'v_mfma_f32_16x16x16_bf16 v[{D}:{D+3}], v[{f}:{f+1}], v[{PLO}:{PLO+1}], v[{D}:{D+3}]')
def xors(base): return [f'v_xor_b32 v{XT+k-1}, {k << 5}, v{base}' for k in range(1, 4)]

def setup(a, L_XCH, L_CTL):
    i, g = 64, 65
    a(f'''v_and_b32 v{i}, 15, v0
v_bfe_u32 v{g}, v0, 4, 2
s_lshl_b32 s6, s5, 3
v_and_b32 v66, 7, v{i}
v_lshlrev_b32 v66, 1, v66
v_xor_b32 v66, v66, v{g}
v_xor_b32 v66, s6, v66
v_lshlrev_b32 v66, 4, v66
v_mul_u32_u24 v{BQH}, 768, v{i}
v_add_u32 v{BQH}, v{BQH}, v66
v_lshrrev_b32 v67, 1, v{i}
v_lshlrev_b32 v66, 1, v67
v_xor_b32 v66, v66, v{g}
v_xor_b32 v66, s6, v66
v_lshlrev_b32 v66, 4, v66
v_mul_u32_u24 v{BQL}, 768, v67
v_add_u32 v{BQL}, v{BQL}, v66
v_add_u32 v{BQL}, 24576, v{BQL}
v_lshrrev_b32 v67, 2, v{i}
v_and_b32 v68, 3, v{i}
v_lshl_add_u32 v69, v{g}, 2, v67
v_and_b32 v66, 7, v69
v_lshlrev_b32 v66, 1, v66
v_lshrrev_b32 v70, 1, v68
v_xor_b32 v66, v66, v70
v_xor_b32 v66, s6, v66
v_lshlrev_b32 v66, 4, v66
v_and_b32 v71, 1, v68
v_lshl_add_u32 v66, v71, 3, v66
v_mul_u32_u24 v{BPH}, 768, v69
v_add_u32 v{BPH}, v{BPH}, v66
v_lshrrev_b32 v67, 1, v67
v_lshl_add_u32 v69, v{g}, 1, v67
v_lshlrev_b32 v66, 1, v69
v_xor_b32 v66, v66, v70
v_xor_b32 v66, s6, v66
v_lshlrev_b32 v66, 4, v66
v_lshl_add_u32 v66, v71, 3, v66
v_mul_u32_u24 v{BPL}, 768, v69
v_add_u32 v{BPL}, v{BPL}, v66
v_add_u32 v{BPL}, 24576, v{BPL}
v_and_b32 v66, 63, v0
v_lshlrev_b32 v66, 4, v66
s_lshl_b32 s6, s3, 11
s_add_u32 s6, s6, {L_XCH}
v_add_u32 v{XW}, s6, v66
s_xor_b32 s7, s3, 2
s_lshl_b32 s6, s7, 11
s_add_u32 s6, s6, {L_XCH}
v_add_u32 v{XR}, s6, v66
s_lshl_b32 s6, s3, 4
s_add_u32 s6, s6, {L_CTL}
v_mov_b32 v{CA}, s6
s_lshl_b32 s6, s7, 4
s_add_u32 s6, s6, {L_CTL}
v_mov_b32 v{WA}, s6
v_xor_b32 v{XT}, 64, v{BQL}
v_xor_b32 v{XT+1}, 64, v{BQH}''')
    for r in list(range(ACC, ACC + 96)) + list(range(LF, LF + 24)) + [PLO, PLO + 1, L, 0, 1, 2, 3]: a(f'v_mov_b32 v{r}, 0')
    a('''s_mov_b32 s21, -1.0
s_mov_b32 s22, 0xff800000
s_mov_b32 s20, 0
s_mov_b32 s23, 1''')

def loop(a, c, NU, NS, SLOT, SPIN, exit_label):
    LA = c.la
    assert LA >= 8
    if c.stamps: a('s_mov_b64 s[64:65], 0')
    a0 = a
    def a(t):
        for l in t.split('\n'):
            if not any(k in l for k in c.drop): a0(l)
    a(f's_mov_b32 s26, {SLOT}\ns_mov_b32 s27, {(-(NS-1)*SLOT) & 0xffffffff}')
    if c.prio: a('s_cmp_eq_u32 s4, 0\ns_cbranch_scc1 C_spin\ns_setprio 1')
    a('s_branch C_spin\n.p2align 6\nC_top:')
    q = Q(a, [f'q{j}' for j in range(6)])
    hx = xors(BPH); lx = xors(BPL)
    nxt = 6
    for j in range(18):
        if j % c.wq == 0: q.need(*[f'q{k}' for k in range(j, min(18, j + c.wq))])
        mm_qk(a, j)
        n = 2 if j < LA - 6 else 1
        for _ in range(n):
            if nxt < 18: rd_qk(q, nxt); nxt += 1
        if j == 10: a(hx[0]); a(hx[1])
        if j == 11: a(hx[2]); a(f'v_mov_b32 v{T}, s23')
        if j >= 12: rd_h(q, j - 6)
    for b in range(12):
        mm_l(a, b)
        if b == 0: rd_h(q, 0)
        if b == 1: rd_h(q, 1)
        if b == 2: q.op(f'ds_write_b128 v{XW}, v[{S0}:{S0+3}]', 'w'); a(f's_add_u32 s20, s20, 1\ns_cmp_eq_u32 s20, {NS}')
        if b == 3: q.op(f'ds_write_b128 v{XW}, v[{S1}:{S1+3}] offset:1024', 'w'); a('s_cselect_b32 s24, s27, s26\ns_cselect_b32 s20, 0, s20')
        if b == 4: q.op(f'ds_write_b32 v{WA}, v{T} offset:8', 'w'); a(f'v_add_u32 v{T}, 1, v{T}')
        if b == 5: a(f'v_add_u32 v{BQL}, s24, v{BQL}\nv_add_u32 v{BQH}, s24, v{BQH}')
        if b == c.xr:
            q.op(f'ds_read_b32 v{T+1}, v{CA} offset:8', 'xf')
            q.op(f'ds_read_b128 v[{X}:{X+3}], v{XR}', 'x0')
            q.op(f'ds_read_b128 v[{X+4}:{X+7}], v{XR} offset:1024', 'x1')
        if b >= 8: rd_h(q, b - 6)
    for l in lx: a(l)
    a(f'v_add_u32 v{BPH}, s24, v{BPH}')
    q.need('x0')
    a(f'v_cmp_gt_u32 s[28:29], s23, v{T+1}')
    for r in range(4): a(f'v_add_f32 v{X+r}, v{S0+r}, v{X+r}')
    q.need('x1')
    for r in range(4, 8): a(f'v_add_f32 v{X+r}, v{S0+r}, v{X+r}')
    a('C_back:')
    for r in (0, 4, 1, 5, 2, 6, 3, 7): a(f'v_exp_f32 v{X+r}, v{X+r}')
    PP = LF
    PP = LF + 20
    for r in range(4): a(f'v_add_f32 v{PP+r}, v{X+r}, v{X+4+r}')
    a(f'''v_add_f32 v{PLO}, v{PP}, v{PP+1}
v_add_f32 v{PLO+1}, v{PP+2}, v{PP+3}
v_add_f32 v{T+1}, v{PLO}, v{PLO+1}
v_cmp_lt_f32 vcc, s21, v{T+1}''')
    for r in range(4): a(f'v_cvt_pk_bf16_f32 v{SL+r}, v{X+2*r}, v{X+2*r+1}')
    a('s_or_b64 vcc, vcc, s[28:29]\ns_cbranch_scc1 C_fix')
    q.need('h5')
    fill = [f'v_add_f32 v{L}, v{L}, v{T+1}', f'v_cvt_pk_bf16_f32 v{PLO}, v{PP}, v{PP+1}', f'v_cvt_pk_bf16_f32 v{PLO+1}, v{PP+2}, v{PP+3}',
            's_add_u32 s23, s23, 1', f'v_swap_b32 v{XW}, v{XR}', '']
    for t in range(6):
        mm_h(a, t)
        if t == 1: q.op(f'ds_read_b32 v{T+1}, v{CA}', 'c')
        rd_l(q, 2 * t); rd_l(q, 2 * t + 1)
        if t == 5: q.op(f'ds_write_b32 v{CA}, v{T} offset:4', 'w')
        if fill[t]: a(fill[t])
        if t == 4:
            q.need('c')
            a(f'v_cmp_gt_u32 vcc, s23, v{T+1}')
    a(f'v_xor_b32 v{XT}, 64, v{BQL}\ns_cbranch_vccnz C_slow')
    late = [f'v_xor_b32 v{XT+1}, 64, v{BQH}', f'v_add_u32 v{BPL}, s24, v{BPL}', '', '', '', '']
    for t in range(6, 12):
        mm_h(a, t); rd_qk(q, t - 6)
        if late[t - 6]: a(late[t - 6])
    a('s_branch C_top')
    a('C_slow:')
    if c.stamps: a('s_add_u32 s65, s65, 1')
    for t in range(6, 12):
        mm_h(a, t)
        if late[t - 6]: a(late[t - 6])
    a(f's_waitcnt lgkmcnt(0)\ns_cmp_gt_u32 s23, {NU}\ns_cbranch_scc1 {exit_label}')
    a(f'''C_spin:
s_mov_b32 s30, {SPIN}
C_sp1:
ds_read_b32 v{T+1}, v{CA}
s_sub_u32 s30, s30, 1
s_cselect_b32 s25, 0, s23
s_waitcnt lgkmcnt(0)
v_cmp_gt_u32 vcc, s25, v{T+1}
s_cbranch_vccnz C_sp1''')
    q = Q(a)
    for j in range(6): rd_qk(q, j)
    a('s_branch C_top')
    a('C_fix:')
    if c.stamps: a('s_add_u32 s64, s64, 1')
    a(f'''s_mov_b32 s30, {SPIN}
C_xs1:
ds_read_b32 v{T+1}, v{CA} offset:8
ds_read_b128 v[{X}:{X+3}], v{XR}
ds_read_b128 v[{X+4}:{X+7}], v{XR} offset:1024
s_sub_u32 s30, s30, 1
s_cselect_b32 s25, 0, s23
s_waitcnt lgkmcnt(0)
v_cmp_gt_u32 vcc, s25, v{T+1}
s_cbranch_vccnz C_xs1''')
    for r in range(8): a(f'v_add_f32 v{X+r}, v{S0+r}, v{X+r}')
    a(f'''s_cmp_lg_u64 s[28:29], 0
s_mov_b64 s[28:29], 0
s_cbranch_scc1 C_back
v_max3_f32 v{T+1}, v{X}, v{X+1}, v{X+2}
v_max3_f32 v{T+1}, v{T+1}, v{X+3}, v{X+4}
v_max3_f32 v{T+1}, v{T+1}, v{X+5}, v{X+6}
v_max_f32 v{T+1}, v{T+1}, v{X+7}''')
    D = T + 1
    allreduce_g(a, D, LF + 20, 'v_max_f32')
    a(f'v_max_f32 v{D}, s22, v{D}\ns_mov_b32 s21, {f2u(2.0**c.thr)}\ns_mov_b32 s22, 0')
    for r in range(8): a(f'v_sub_f32 v{X+r}, v{X+r}, v{D}')
    for r in range(4): a(f'v_fmac_f32 v{NEGM+r}, -0.5, v{D}')
    a(f's_cmp_eq_u32 s23, 1\ns_cbranch_scc1 C_back')
    a(f'v_sub_f32 v{D}, 0, v{D}\nv_exp_f32 v{D}, v{D}\ns_nop 0')
    a(f'v_mul_f32 v{L}, v{L}, v{D}')
    for r in range(96): a(f'v_mul_f32 v{ACC+r}, v{ACC+r}, v{D}')
    a('s_branch C_back')
```

```python
import sys, struct
from asmlib import *
from gen_base import ARG, SZ, f2u, LOG2E, allreduce_g
import comp2 as K
WS_QF = 0x0; WS_TF = 0x6000; WS_AF = 0xC000; WS_T2T = 0x20000; WS_WOV = 0x80000; WS_DUMMY = 0x120000
WS_STAMP = 0x1F0000; WS_ML = 0x200000; WS_HP = 0x218000; WS_OP = 0x260000; WS_PART = 0x300000
NSTR = 192; NHLP = 64; NU = 24; NS = 5; SLOT = 30720
L_XCH = NS * SLOT; L_CTL = L_XCH + 8192; L_GA = L_CTL + 64; L_GO = L_CTL + 68; L_RS = L_CTL + 128
LDS_BYTES = 163840
WS_SIG = 0x18000
C_T2 = WS_SIG; C_WOV = WS_SIG + 0x2000; F_T2 = WS_SIG + 0x4000; F_GO = WS_SIG + 0x6000; F_PRE = 128
A0 = 4; B0 = 28; C0_ = 40
class Cfg: pass
uid = [0]
def lab(p):
    uid[0] += 1; return f'{p}{uid[0]}'

def stamp(a, c, k):
    if c.stamps: a(f's_memrealtime s[{70+2*k}:{71+2*k}]')
def stamp_out(a, c, slot):
    if not c.stamps: return
    a('s_waitcnt lgkmcnt(0)\ns_mov_b64 exec, -1')
    for r in range(16): a(f'v_mov_b32 v{100+r}, s{70+r}')
    a(f'''s_lshl_b32 s68, s2, 2
s_add_u32 s68, s68, {slot}
s_lshl_b32 s68, s68, 6
s_add_u32 s68, s68, {WS_STAMP}
v_mov_b32 v116, s68
s_mov_b64 exec, 1''')
    for r in range(4): a(f'buffer_store_dwordx4 v[{100+4*r}:{103+4*r}], v116, s[32:35], 0 offen offset:{16*r}')
    a('s_mov_b64 exec, -1')
def mksrd(a, d, src, name):
    a(f's_mov_b32 s{d}, s{src}\ns_and_b32 s{d+1}, s{src+1}, 0xffff\ns_mov_b32 s{d+2}, {SZ[name]}\ns_mov_b32 s{d+3}, 0x20000')
def signal_last(a, c, cnt, n, flag, vt):
    l = lab('G')
    a(f'''s_mov_b32 s6, 1
s_atomic_add s6, s[54:55], {cnt} glc
s_waitcnt lgkmcnt(0)
s_cmp_lg_u32 s6, {n-2}
s_cbranch_scc1 {l}
s_mov_b32 s6, 1
s_atomic_add s6, s[54:55], {flag}
s_waitcnt lgkmcnt(0)
{l}:''')
def wait_pre(a, c, vt, sleep=0):
    l = lab('W')
    a(f'''s_mov_b32 s30, {c.spin}
{l}:
buffer_load_dwordx4 v[{vt}:{vt+3}], off, s[88:91], 0 offset:{F_PRE} sc1
s_sub_u32 s30, s30, 1
s_cselect_b32 s25, 0, 1
s_waitcnt vmcnt(0)
v_min3_u32 v{vt}, v{vt}, v{vt+1}, v{vt+2}
v_min_u32 v{vt}, v{vt}, v{vt+3}
v_cmp_gt_u32 vcc, s25, v{vt}''')
    if sleep: a(f's_cbranch_vccz {l}x\ns_sleep {sleep}\ns_branch {l}\n{l}x:')
    else: a(f's_cbranch_vccnz {l}')
def wait_flag(a, c, off, vt, sleep, pre=False):
    if pre: wait_pre(a, c, vt, sleep)
    l = lab('W')
    a(f'''s_mov_b32 s30, {c.spin}
s_mov_b32 s24, {off}
{l}:
buffer_load_dword v{vt}, off, s[32:35], s24 sc1
s_sub_u32 s30, s30, 1
s_cbranch_scc1 {l}x
s_waitcnt vmcnt(0)
v_cmp_eq_u32 vcc, -1, v{vt}
s_cbranch_vccz {l}x
s_sleep {sleep}
s_branch {l}
{l}x:''')
SW = 14
def row_addr(a, wide):
    for j in range(3):
        a(f'''v_add_u32 v4, {64*j}, v3
v_mul_u32_u24 v5, 1366, v4
v_lshrrev_b32 v5, 16, v5
v_lshlrev_b32 v4, 5, v5
v_xor_b32 v{SW+j}, v8, v4''')
        if wide: a(f'v_mul_u32_u24 v5, 768, v5\nv_add_u32 v{SW+j}, v{SW+j}, v5')
        a(f'v_xor_b32 v{SW+3+j}, 128, v{SW+j}')
def rows16(a, srd, soff, ldsreg, wide, nblk=1):
    for b in range(4 * nblk):
        a(f's_add_u32 m0, s{ldsreg}, {3072*b}\ns_nop 0')
        for j in range(3): a(f'buffer_load_dwordx4 v{SW + 3*((b>>1)&1) + j}, s[{srd}:{srd+3}], s{soff} offen offset:{1024*j} lds')
        a(f's_add_u32 s{soff}, s{soff}, {6144 if wide else 3072}')
def perm_read_addr(a, dst, sbase):
    a(f'''v_lshrrev_b32 v4, 2, v1
v_and_b32 v5, 3, v1
v_lshl_add_u32 v4, v4, 3, v5
v_mul_u32_u24 v4, 768, v4
v_and_b32 v5, 7, v1
v_lshlrev_b32 v5, 1, v5
v_xor_b32 v5, v5, v2
v_lshl_add_u32 v4, v5, 4, v4
v_add_u32 v{dst}, s{sbase}, v4''')
    for k in range(1, 4): a(f'v_xor_b32 v{dst+k}, {64*k}, v{dst}')
def wait_lds(a, c, vaddr, off, need, vt, sleep=0):
    l = lab('W')
    a(f'''s_mov_b32 s30, {c.spin}
{l}:
ds_read_b32 v{vt}, v{vaddr} offset:{off}
s_sub_u32 s30, s30, 1
s_cselect_b32 s25, 0, {need}
s_waitcnt lgkmcnt(0)
v_cmp_gt_u32 vcc, s25, v{vt}''')
    if sleep: a(f's_cbranch_vccz {l}x\ns_sleep {sleep}\ns_branch {l}\n{l}x:')
    else: a(f's_cbranch_vccnz {l}')
def maxu(a, dst, regs):
    regs = list(regs)
    a(f'v_max3_u32 v{dst}, v{regs[0]}, v{regs[1]}, v{regs[2]}'); regs = regs[3:]
    while len(regs) >= 2: a(f'v_max3_u32 v{dst}, v{dst}, v{regs[0]}, v{regs[1]}'); regs = regs[2:]
    if regs: a(f'v_max_u32 v{dst}, v{dst}, v{regs[0]}')
def row_reduce(a, regs, op):
    for sh in (8, 4, 2, 1):
        a('s_nop 1' if len(regs) == 1 else 's_nop 0')
        for r in regs: a(f'{op}_dpp v{r}, v{r}, v{r} row_ror:{sh} row_mask:0xf bank_mask:0xf')
def mf(D, A, B, C=None):
    return f'v_mfma_f32_16x16x32_bf16 v[{D}:{D+3}], v[{A}:{A+3}], v[{B}:{B+3}], ' + ('0' if C is None else f'v[{C}:{C+3}]')

def loader(a, c):
    LAG = c.lag
    a('v_and_b32 v2, 63, v0')
    for j in range(6):
        a(f'''v_add_u32 v3, {64*j}, v2
v_mul_u32_u24 v4, 1366, v3
v_lshrrev_b32 v4, 16, v4
v_mul_u32_u24 v5, 48, v4
v_sub_u32 v5, v3, v5
v_lshlrev_b32 v6, 1, v4
v_xor_b32 v5, v5, v6
v_lshlrev_b32 v5, 4, v5
v_mul_u32_u24 v4, 768, v4
v_add_u32 v5, v5, v4
v_subrev_u32 v{10+j}, {1024*(j%3)}, v5''')
    a(f'''v_and_b32 v16, 3, v0
v_lshlrev_b32 v16, 4, v16
v_add_u32 v16, {L_CTL}, v16
s_mov_b32 s16, s36
s_mov_b32 s27, 0
s_mov_b32 s28, 0''')
    def addr():
        a('''s_mul_i32 s18, s16, 2731
s_lshr_b32 s18, s18, 16
s_mul_i32 s19, s18, 24
s_sub_u32 s19, s16, s19
s_mul_i32 s22, s18, 589824
s_mul_i32 s23, s19, 12288
s_add_u32 s22, s22, s23
s_add_u32 s23, s22, 6144
s_add_u32 s17, s22, 294912
s_add_u32 s26, s17, 6144
s_mul_i32 s24, s16, 6144''')
    back = (LAG - 1) // 30
    pos = LAG - 30 * back
    def unit(publish):
        n = 0
        for gi, (so, sr) in enumerate(((24, 12), (22, 8), (17, 8), (23, 8), (26, 8))):
            off = (24576, 0, 12288, 6144, 18432)[gi]
            for h in range(2):
                a(f's_add_u32 m0, s27, {off + 3072*h}\ns_nop 0')
                for j in range(3):
                    a(f'buffer_load_dwordx4 v{10+3*h+j}, s[{sr}:{sr+3}], s{so} offen offset:{1024*j} {c.flags} lds')
                n += 3
                a(f's_waitcnt vmcnt({LAG})')
                if publish and n >= pos and n - 3 < pos:
                    a(f's_sub_u32 s29, s28, {back}\nv_mov_b32 v17, s29\nds_write_b32 v16, v17')
        a(f'''s_add_u32 s16, s16, {NSTR}
s_add_u32 s27, s27, {SLOT}
s_cmp_eq_u32 s27, {NS*SLOT}
s_cselect_b32 s27, 0, s27
s_add_u32 s28, s28, 1''')
    addr(); unit(False)
    a('s_barrier\nLD_loop:')
    addr()
    a(f's_cmp_lt_u32 s28, {NS}\ns_cbranch_scc1 LD_go\ns_sub_u32 s29, s28, {NS-2}')
    wait_lds(a, c, 16, 4, 's29', 17)
    a('LD_go:')
    unit(True)
    a(f's_cmp_lt_u32 s28, {NU}\ns_cbranch_scc1 LD_loop')
    stamp(a, c, 1)
    if back: a(f's_waitcnt vmcnt(30)\nv_mov_b32 v17, {NU-1}\nds_write_b32 v16, v17')
    a(f's_waitcnt vmcnt(0)\nv_mov_b32 v17, {NU}\nds_write_b32 v16, v17')
    stamp(a, c, 2)

def compute(a, c):
    a(f'''s_and_b32 s4, s3, 1
s_lshr_b32 s5, s3, 1
v_and_b32 v76, 63, v0
v_lshlrev_b32 v76, 4, v76
s_mul_i32 s42, s4, 24576
s_lshl_b32 s7, s5, 11
s_add_u32 s42, s42, s7
s_add_u32 s42, s42, {WS_AF}
s_mul_i32 s40, s4, {8*49152}
s_mul_i32 s7, s5, {16*49152}
s_add_u32 s40, s40, s7
s_lshl_b32 s7, s36, 8
s_add_u32 s40, s40, s7
s_add_u32 s40, s40, {WS_PART}
s_lshl_b32 s41, s4, 8
s_lshl_b32 s7, s36, 9
s_add_u32 s41, s41, s7
s_lshl_b32 s7, s5, 7
s_add_u32 s41, s41, s7
s_add_u32 s41, s41, {WS_ML}''')
    K.setup(a, L_XCH, L_CTL)
    a(f'v_mov_b32 v77, {L_CTL}\ns_barrier')
    wait_lds(a, c, 77, 64, 1, 78, sleep=1)
    stamp(a, c, 5)
    a(f's_mov_b32 s30, {c.spin}\nCA_poll:\ns_mov_b32 s6, s42')
    for k in range(6):
        for j in range(2):
            d = K.RA + 8 * k + 4 * j
            a(f'buffer_load_dwordx4 v[{d}:{d+3}], v76, s[32:35], s6 offen offset:{1024*j} sc1')
        if k < 5: a('s_add_u32 s6, s6, 4096')
    a('s_sub_u32 s30, s30, 1\ns_cselect_b32 s25, 0, -1')
    for h in range(3):
        a(f's_waitcnt vmcnt({8-4*h})')
        maxu(a, 78 + h, range(K.RA + 16 * h, K.RA + 16 * h + 16))
    a('v_max3_u32 v78, v78, v79, v80\nv_cmp_eq_u32 vcc, -1, v78\ns_and_b32 vcc_lo, vcc_lo, s25\ns_and_b32 vcc_hi, vcc_hi, s25\ns_cmp_lg_u64 vcc, 0\ns_cbranch_scc1 CA_poll')
    stamp(a, c, 1)
    if c.stamps: a('s_memtime s[60:61]\ns_waitcnt lgkmcnt(0)')
    K.loop(a, c, NU, NS, SLOT, c.spin, 'C_exit')
    a('C_exit:')
    stamp(a, c, 2)
    if c.stamps: a('s_memtime s[62:63]')
    FA = K.XT; MA = K.XT + 1; X = K.X
    pre = f'''v_mov_b32 v{X+2}, {L_CTL}
v_mbcnt_lo_u32_b32 v{X}, -1, 0
ds_read_b32 v{X+3}, v{X+2} offset:68
v_mbcnt_hi_u32_b32 v{X}, -1, v{X}
s_mov_b32 s6, 49152
v_bfe_u32 v{X+1}, v{X}, 1, 3
v_mul_lo_u32 v{FA}, v{X+1}, s6
v_and_b32 v{X+1}, 1, v{X}
v_lshl_add_u32 v{FA}, v{X+1}, 6, v{FA}
v_and_b32 v{X+1}, 48, v{X}
v_add_u32 v{FA}, v{FA}, v{X+1}
v_lshlrev_b32 v{MA}, 3, v{X}'''.split('\n')
    def cvt(s):
        f = K.RING + 4 * s
        return [f'v_cvt_pk_bf16_f32 v{f+k}, v{K.ACC+8*s+2*k}, v{K.ACC+8*s+2*k+1}' for k in range(4)]
    early = pre + cvt(0) + cvt(1) + cvt(2)
    for t in range(12):
        K.mm_l(a, t)
        for l in early[2*t:2*t+2]: a(l)
    a(f's_waitcnt lgkmcnt(0)\nv_cmp_eq_u32 vcc, 0, v{X+3}\ns_cbranch_vccnz C_nogo\nC_go:')
    for s in range(12):
        f = K.RING + 4 * s
        if s >= 3:
            for l in cvt(s): a(l)
        if s and s % 2 == 0: a(f's_add_u32 s40, s40, {32*49152}')
        a(f'buffer_store_dwordx4 v[{f}:{f+3}], v{FA}, s[32:35], s40 offen offset:{128*(s%2)} {c.flfl}')
        if c.flpace and s >= c.flpace: a(f's_waitcnt vmcnt({c.flpace})')
    stamp(a, c, 3)
    allreduce_g(a, K.L, K.T, 'v_add_f32')
    a(f'''v_mul_f32 v{K.T}, -2.0, v{K.NEGM}
v_mov_b32 v{K.T+1}, v{K.L}
s_mov_b64 exec, 0xffff
s_waitcnt vmcnt(0)
buffer_store_dwordx2 v[{K.T}:{K.T+1}], v{MA}, s[32:35], s41 offen sc1
s_barrier''')
    if c.stamps:
        stamp(a, c, 4)
        a('s_waitcnt lgkmcnt(0)\ns_sub_u32 s84, s62, s60\ns_lshl_b32 s85, s65, 16\ns_or_b32 s85, s85, s64')
        a('s_cmp_lg_u32 s3, 0\ns_cbranch_scc1 K_done'); stamp_out(a, c, 0)
    a('s_endpgm\nC_nogo:')
    wait_lds(a, c, X + 2, 68, 1, X + 3)
    a('s_branch C_go')

RW = 160; RD = 64; RA = 112
def service(a, c):
    a(f'''v_and_b32 v3, 63, v0
v_lshlrev_b32 v8, 4, v3
v_mov_b32 v19, {L_CTL}
s_cmp_lg_u32 s3, 1
s_cbranch_scc1 S_other''')
    for r in range(4): a(f'v_mov_b32 v{20+r}, 0')
    a(f'''v_add_u32 v4, {L_CTL}, v8
ds_write_b128 v4, v[20:23]
ds_write_b128 v4, v[20:23] offset:1024
v_mov_b32 v5, 1
v_mov_b32 v6, 0xff800000
s_mov_b64 exec, 15
ds_write_b32 v4, v5 offset:4
s_mov_b64 exec, -1
s_waitcnt lgkmcnt(0)
s_barrier''')
    wait_lds(a, c, 19, 0, c.adelay, 6, sleep=2)
    wait_pre(a, c, 24, sleep=2)
    a(f'''v_min_u32 v4, 47, v3
v_lshlrev_b32 v4, 10, v4
s_mov_b32 s6, {WS_AF}
s_mov_b32 s30, {c.spin}
S_bell:
buffer_load_dword v6, v4, s[32:35], s6 offen sc1
s_sub_u32 s30, s30, 1
s_cbranch_scc1 S_rang
s_waitcnt vmcnt(0)''')
    a('v_cmp_ne_u32 vcc, -1, v6\ns_cbranch_vccz S_bell' if c.bell_any else 'v_cmp_eq_u32 vcc, -1, v6\ns_cbranch_vccnz S_bell')
    a('S_rang:\nds_write_b32 v19, v5 offset:64')
    wait_lds(a, c, 19, 0, c.godelay, 6, sleep=8)
    wait_flag(a, c, F_GO, 6, 16, pre=False)
    a('ds_write_b32 v19, v5 offset:68\ns_branch S_wov\nS_other:\ns_barrier\nS_go:')
    wait_lds(a, c, 19, 68, 1, 6, sleep=8)
    a('S_wov:')
    stamp(a, c, 7)
    a(f'''s_lshr_b32 s6, s38, 1
s_mul_i32 s6, s6, {24*4096}
s_mul_i32 s7, s3, {6*4096}
s_add_u32 s6, s6, s7
s_and_b32 s7, s38, 1
s_lshl_b32 s7, s7, 11
s_add_u32 s6, s6, s7
s_add_u32 s6, s6, {WS_WOV}''')
    for k in range(12):
        a(f'buffer_load_dwordx4 v[{RW+4*k}:{RW+4*k+3}], v8, s[32:35], s6 offen offset:{1024*(k%2)} sc1')
        if k % 2: a('s_add_u32 s6, s6, 4096')
        if c.wovpace and k % 4 == 3: a('s_waitcnt vmcnt(4)')

def rstage(a, c):
    PST = 288
    a('''v_and_b32 v1, 15, v0
v_bfe_u32 v2, v0, 4, 2
v_lshrrev_b32 v3, 3, v1
v_mul_u32_u24 v3, 0x0202, v3
v_add_u32 v3, 0x0100, v3
v_and_b32 v4, 1, v1
v_lshlrev_b32 v4, 4, v4
v_lshlrev_b32 v3, v4, v3
v_mov_b32 v5, 0x0c0c0000
v_lshrrev_b32 v5, v4, v5
v_or_b32 v4, v3, v5
v_bfe_u32 v5, v1, 1, 2
v_mov_b32 v6, 0x0c0c0c0c''')
    for r in range(4): a(f'v_cmp_eq_u32 vcc, {r}, v5\ns_nop 1\nv_cndmask_b32 v{20+r}, v6, v4, vcc')
    a(f'''v_lshl_add_u32 v9, v1, 2, v2
v_lshlrev_b32 v9, 9, v9
s_lshr_b32 s6, s39, 3
s_lshl_b32 s6, s6, 8
s_and_b32 s7, s38, 1
s_lshl_b32 s7, s7, 7
s_add_u32 s6, s6, s7
s_and_b32 s7, s39, 7
s_lshl_b32 s7, s7, 4
s_add_u32 s6, s6, s7
s_mul_i32 s7, s3, {48*512}
s_add_u32 s6, s6, s7
s_add_u32 s40, s6, {WS_ML}
s_mul_i32 s6, s37, 49152
s_mul_i32 s7, s3, 12288
s_add_u32 s6, s6, s7
s_add_u32 s41, s6, {WS_PART}
s_add_u32 s42, s41, 4096
s_add_u32 s43, s41, 8192
v_mul_u32_u24 v18, 12, v1
v_mul_u32_u24 v3, {12*768}, v2
v_add_u32 v18, v18, v3
s_mul_i32 s6, s39, 24
s_add_u32 s6, s6, s38
s_mul_i32 s6, s6, 768
s_mul_i32 s7, s3, 192
s_add_u32 s6, s6, s7
s_add_u32 s47, s6, {WS_HP}
s_add_u32 s46, s6, {WS_DUMMY}
s_lshl_b32 s7, s3, 2
s_add_u32 s7, s7, {L_RS}
v_mov_b32 v14, s7
v_and_b32 v3, 1, v2
v_lshlrev_b32 v15, 5, v3
v_add_u32 v15, {L_RS}, v15          ; (M,L) read
s_mul_i32 s7, s3, {PST}
s_add_u32 s7, s7, {L_RS+64}
v_lshl_add_u32 v12, v3, 3, s7
v_and_b32 v4, 3, v1
v_lshl_add_u32 v12, v4, 4, v12
v_lshrrev_b32 v5, 3, v1
v_lshl_add_u32 v12, v5, 6, v12
v_bfe_u32 v5, v1, 2, 1
v_lshl_add_u32 v12, v5, 7, v12
v_mul_u32_u24 v13, {PST}, v4
v_lshl_add_u32 v13, v5, 7, v13
v_lshl_add_u32 v13, v2, 4, v13
v_add_u32 v13, {L_RS+64}, v13
s_mov_b32 s45, 0''')
    for r in range(48): a(f'v_mov_b32 v{RD+r}, 0')
    if c.dry: a('s_cmp_eq_u32 s3, 1\ns_cselect_b32 s45, 0xfff, 0')
    a(f'''R_again:
v_mov_b32 v28, 0xff800000
v_mov_b32 v29, 0
v_mov_b32 v30, 0xff800000
v_mov_b32 v31, 0
s_mov_b32 s44, s45
s_cmp_lg_u32 s45, 0
s_cselect_b32 s31, s46, s47
s_cbranch_scc1 R_start''')
    a('s_barrier')
    a('R_start:')
    stamp(a, c, 3)
    a(f'''s_mov_b32 s30, {c.spin}
R_bell:
s_mov_b32 exec_lo, 0x0fff0fff
s_mov_b32 exec_hi, 0x0fff0fff
buffer_load_dwordx4 v[28:31], v9, s[32:35], s40 offen sc1
s_mov_b64 exec, -1
s_sub_u32 s30, s30, 1
s_cselect_b32 s26, 0xfff, 0
s_waitcnt vmcnt(0)
v_max3_u32 v3, v28, v29, v30
v_max_u32 v3, v3, v31
v_cmp_ne_u32 s[24:25], -1, v3
s_and_b32 s24, s24, s25
s_lshr_b32 s25, s24, 16
s_and_b32 s24, s24, s25
s_and_b32 s24, s24, 0xfff
s_or_b32 s24, s24, s26
s_andn2_b32 s24, s24, s44
s_or_b32 s44, s44, s24
s_or_b32 s25, s24, s45
s_cbranch_scc0 R_bell''')
    for k in range(12):
        a(f's_bitcmp1_b32 s24, {k}\ns_cselect_b64 exec, -1, 0')
        a(f'buffer_load_dwordx4 v[{RD+4*k}:{RD+4*k+3}], v8, s[32:35], s{41+k//4} offen offset:{1024*(k%4)} sc1')
    a('''s_mov_b64 exec, -1
s_cmp_lg_u32 s44, 0xfff
s_cbranch_scc1 R_bell
v_mov_b32 v4, v28
v_mov_b32 v5, v30''')
    def red2(op):
        row_reduce(a, [4, 5], op)
        for sw in ('32', '16'):
            a(f'''v_mov_b32 v6, v4
v_mov_b32 v7, v5
s_nop 0
v_permlane{sw}_swap_b32 v6, v4
v_permlane{sw}_swap_b32 v7, v5
s_nop 0
{op} v4, v4, v6
{op} v5, v5, v7''')
    red2('v_max_f32')
    a('''ds_write2_b32 v14, v4, v5 offset0:0 offset1:8
v_sub_f32 v28, v28, v4
v_sub_f32 v30, v30, v5
v_exp_f32 v28, v28
v_exp_f32 v30, v30
s_nop 0
v_cvt_pk_bf16_f32 v10, v28, v30
v_lshlrev_b32 v4, 16, v10
v_and_b32 v5, 0xffff0000, v10
v_mul_f32 v4, v4, v29
v_mul_f32 v5, v5, v31''')
    red2('v_add_f32')
    a('ds_write2_b32 v14, v4, v5 offset0:4 offset1:12')
    for k in range(12):
        a(f'v_mov_b32_dpp v11, v10 row_newbcast:{k} row_mask:0xf bank_mask:0xf')
        for r in range(4): a(f'v_perm_b32 v{RA+4*k+r}, v11, v11, v{20+r}')
    a('s_waitcnt vmcnt(0)')
    stamp(a, c, 4)
    for k in range(12): a(mf(24, RA + 4*k, RD + 4*k, 24 if k else None))
    a('''s_nop 5
s_mov_b32 exec_lo, 0x0f0f0f0f
s_mov_b32 exec_hi, 0xf0f0f0f0
v_cvt_pk_bf16_f32 v24, v24, v25
v_cvt_pk_bf16_f32 v25, v26, v27
s_cmp_lg_u32 s45, 0
ds_write_b64 v12, v[24:25]
s_mov_b64 exec, -1
s_waitcnt lgkmcnt(0)
s_cbranch_scc1 R_nb2
s_barrier
R_nb2:
ds_read_b128 v[4:7], v15
ds_read_b128 v[36:39], v13
ds_read_b128 v[40:43], v13 offset:64
ds_read_b128 v[28:31], v15 offset:16
s_waitcnt lgkmcnt(3)
v_max3_f32 v3, v4, v5, v6
v_max_f32 v3, v3, v7
s_waitcnt lgkmcnt(0)''')
    fl = [f'v_sub_f32 v{4+r}, v{4+r}, v3' for r in range(4)] + [f'v_exp_f32 v{4+r}, v{4+r}' for r in range(4)] + [
        'v_mul_f32 v3, v4, v28', 'v_fmac_f32 v3, v5, v29', 'v_fmac_f32 v3, v6, v30', 'v_fmac_f32 v3, v7, v31', 'v_rcp_f32 v3, v3', 's_nop 0'] + [f'v_mul_f32 v{4+r}, v{4+r}, v3' for r in range(4)]
    def comb(t):
        D = RD + 4 * t
        return [f'v_mul_f32 v{D}, v4, v{D}'] + [f'v_fmac_f32 v{D}, v{4+r}, v{D+r}' for r in range(1, 4)]
    for t in range(6): fl += comb(t) + ([f'v_cvt_pk_bf16_f32 v{24+t//2}, v{RD+4*t-4}, v{RD+4*t}'] if t % 2 else [])
    for t in range(6):
        for s in range(2):
            a(mf(RD + 4*t, 36 + 4*s, RW + 8*t + 4*s, RD + 4*t if s else None))
            for l in fl[:2]: a(l)
            fl = fl[2:]
    for l in fl: a(l)
    a('''s_mov_b64 exec, 0xffffffff
buffer_store_dwordx3 v[24:26], v18, s[32:35], s31 offen sc1
s_mov_b64 exec, -1
s_cmp_lg_u32 s45, 0
s_mov_b32 s45, 0
s_cbranch_scc1 R_again''')
    if c.stamps:
        stamp(a, c, 5); a('s_waitcnt vmcnt(0)'); stamp(a, c, 6)
        a('s_cmp_gt_u32 s3, 1\ns_cbranch_scc1 K_done\ns_add_u32 s69, s3, 1'); stamp_out(a, c, 's69')
    a('s_endpgm')

HWT = 112
L_W = 0; L_QN = 24576; QN_ST = 800
L_HN = 0; HN_ST = 832; L_G = 4096; G_ST = 448; L_ST = 8192
def stage32(a, srd, scol):
    a(f's_mul_i32 s6, s3, {48*768}\ns_add_u32 s6, s6, s{scol}\ns_mul_i32 s7, s3, {48*64}')
    for k in range(3):
        a(f's_add_u32 m0, s7, {L_W + 1024*k}\ns_nop 0\nbuffer_load_dwordx4 v10, s[{srd}:{srd+3}], s6 offen lds')
        if k < 2: a(f's_add_u32 s6, s6, {16*768}')
def role_a(a, c):
    a(f'''s_sub_u32 s40, s2, {A0}
s_cmp_ge_u32 s40, 12
s_cselect_b32 s38, 1, 0          ; qh
s_mul_i32 s6, s38, 12
s_sub_u32 s39, s40, s6           ; m
s_lshl_b32 s40, s40, 10
s_add_u32 s40, s40, {WS_QF}
s_lshl_b32 s41, s39, 6
v_lshrrev_b32 v4, 5, v3
v_and_b32 v5, 31, v3
v_mul_u32_u24 v6, 768, v4
v_lshl_add_u32 v6, v5, 3, v6
s_lshl_b32 s6, s38, 3
s_add_u32 s6, s6, s3
s_mul_i32 s6, s6, 1536''')
    for k in range(3): a(f'buffer_load_dwordx2 v[{24+2*k}:{25+2*k}], v6, s[8:11], s6 offen offset:{256*k}')
    stage32(a, 92, 41)
    a(f'''v_mul_u32_u24 v7, {QN_ST}, v4
v_lshl_add_u32 v7, v5, 3, v7
s_mul_i32 s6, s3, {2*QN_ST}
s_add_u32 s6, s6, {L_QN}
v_add_u32 v7, s6, v7
s_waitcnt vmcnt(3)''')
    stamp(a, c, 3)
    for k in range(6): a(f'v_lshlrev_b32 v{32+2*k}, 16, v{24+k}\nv_and_b32 v{33+2*k}, 0xffff0000, v{24+k}')
    def red(r):
        row_reduce(a, [r], 'v_add_f32')
        a(f'v_mov_b32 v5, v{r}\ns_nop 1\nv_permlane16_swap_b32 v5, v{r}\ns_nop 0\nv_add_f32 v{r}, v{r}, v5')
    a('v_add_f32 v4, v32, v33')
    for k in range(2, 12): a(f'v_add_f32 v4, v4, v{32+k}')
    red(4)
    a(f'v_mul_f32 v4, {f2u(1/384)}, v4')
    for k in range(12): a(f'v_sub_f32 v{32+k}, v{32+k}, v4')
    a('v_mul_f32 v4, v32, v32')
    for k in range(1, 12): a(f'v_fmac_f32 v4, v{32+k}, v{32+k}')
    red(4)
    a(f'v_mov_b32 v5, {f2u(1e-5)}\nv_fmac_f32 v5, {f2u(1/384)}, v4\nv_rsq_f32 v5, v5\ns_nop 0')
    for k in range(12): a(f'v_mul_f32 v{32+k}, v{32+k}, v5')
    for k in range(6): a(f'v_cvt_pk_bf16_f32 v{24+k}, v{32+2*k}, v{33+2*k}')
    for k in range(3): a(f'ds_write_b64 v7, v[{24+2*k}:{25+2*k}] offset:{256*k}')
    a(f'''v_lshrrev_b32 v4, 2, v1
v_lshl_add_u32 v4, v2, 3, v4
v_lshlrev_b32 v4, 6, v4
v_and_b32 v5, 3, v1
v_lshl_add_u32 v4, v5, 4, v4
s_lshl_b32 s6, s3, 3
v_add_u32 v4, s6, v4
v_mul_u32_u24 v5, {QN_ST}, v1
v_lshl_add_u32 v5, v2, 4, v5
v_add_u32 v5, {L_QN}, v5
s_add_u32 s40, s40, s6
s_cmp_lg_u32 s3, 7
s_cbranch_scc1 A_w0''')
    wait_pre(a, c, 44)
    a('A_w0:')
    stamp(a, c, 4)
    a('''s_waitcnt vmcnt(0) lgkmcnt(0)
s_barrier
s_cmp_ge_u32 s3, 2
s_cbranch_scc1 H_roles_done''')
    stamp(a, c, 1)
    if c.stamps: a('s_waitcnt lgkmcnt(0)')
    q = K.Q(a)
    def rd(s):
        q.op(f'ds_read_b64_tr_b16 v[{64+4*s}:{65+4*s}], v4 offset:{L_W + 2048*s}', 'x')
        q.op(f'ds_read_b64_tr_b16 v[{66+4*s}:{67+4*s}], v4 offset:{L_W + 2048*s + 256}', 'x')
        q.op(f'ds_read_b128 v[{112+4*s}:{115+4*s}], v5 offset:{64*s}', f'k{s}')
    for s in range(4): rd(s)
    for s in range(12):
        q.need(f'k{s}')
        a(mf(24, 64 + 4*s, 112 + 4*s, 24 if s else None))
        if s + 4 < 12: rd(s + 4)
    a('''s_nop 7
v_cvt_pk_bf16_f32 v24, v24, v25
v_cvt_pk_bf16_f32 v25, v26, v27
buffer_store_dwordx2 v[24:25], v8, s[32:35], s40 offen sc1''')
    stamp(a, c, 2)
    if c.stamps: a('s_cmp_lg_u32 s3, 0\ns_cbranch_scc1 H_roles_done'); stamp_out(a, c, 1)
    a('s_branch H_roles_done')
def role_fill(a, c):
    a(f's_mul_i32 s6, s2, 24576\ns_mul_i32 s7, s3, 3072\ns_add_u32 s6, s6, s7')
    for k in range(3): a(f'buffer_store_dwordx4 v[20:23], v8, s[32:35], s6 offen offset:{1024*k} sc1')
    a(f'''s_lshl_b32 s7, s2, 13
s_add_u32 s7, s7, {WS_SIG}
s_cmp_lg_u32 s3, 7
s_cbranch_scc1 RF_1
buffer_store_dword v20, off, s[32:35], s7 sc1
RF_1:
s_lshl_b32 s6, s2, 2
s_waitcnt vmcnt(0)
s_barrier
s_cmp_lg_u32 s3, 0
s_cbranch_scc1 H_roles_done
s_mov_b64 exec, 1
buffer_store_dword v20, off, s[88:91], s6 offset:{F_PRE} sc1
s_mov_b64 exec, -1''')
    stamp(a, c, 2)
    stamp_out(a, c, 1)
    a('s_branch H_roles_done')
def role_bc(a, c):
    a(f'''s_cmp_eq_u32 s3, 2
s_cbranch_scc0 BC_c
s_cmp_ge_u32 s2, {B0+24}
s_cbranch_scc1 H_roles_done
s_sub_u32 s6, s2, {B0}
s_cmp_ge_u32 s6, 12
s_cselect_b32 s38, 1, 0
s_mul_i32 s7, s38, 12
s_sub_u32 s39, s6, s7
s_lshl_b32 s40, s6, 10
s_add_u32 s40, s40, {WS_TF}
s_mul_i32 s41, s38, 12288
s_add_u32 s41, s41, {WS_QF}
s_mov_b32 s42, 1536
s_mul_i32 s43, s39, {32*1536}
s_mov_b32 s44, 1.0
s_mov_b64 s[48:49], s[96:97]
s_mov_b32 s50, {SZ['wkv']}
s_branch BC_go
BC_c:
s_sub_u32 s38, s3, 3
s_cmp_ge_u32 s38, 2
s_cbranch_scc1 H_roles_done
s_cmp_lt_u32 s2, 40
s_cbranch_scc1 H_roles_done
s_sub_u32 s39, s2, 40
s_mul_i32 s40, s38, 24
s_add_u32 s40, s40, s39
s_lshl_b32 s40, s40, 10
s_add_u32 s40, s40, {WS_AF}
s_mul_i32 s41, s38, 12288
s_add_u32 s41, s41, {WS_TF}
s_mov_b32 s42, 768
s_cmp_ge_u32 s39, 12
s_cselect_b64 s[48:49], s[64:65], s[60:61]
s_cselect_b32 s6, 12, 0
s_sub_u32 s6, s39, s6
s_mul_i32 s43, s6, {32*768}
s_mov_b32 s44, {f2u(384**-0.5 * LOG2E)}
s_mov_b32 s50, {SZ['lat_hi']}
BC_go:
s_mov_b32 s51, 0x20000
s_mul_i32 s47, s3, 24576
s_cmp_eq_u32 s3, 2
s_cbranch_scc0 BC_n''')
    row_addr(a, True)
    rows16(a, 48, 43, 47, True, nblk=2)
    a('s_branch BC_l\nBC_n:')
    row_addr(a, False)
    rows16(a, 48, 43, 47, False, nblk=2)
    a('BC_l:')
    perm_read_addr(a, 32, 47)
    a('s_waitcnt vmcnt(0)')
    for s in range(12):
        a(f'ds_read_b128 v[{112+4*s}:{115+4*s}], v{32+s%4} offset:{256*(s//4)}\nds_read_b128 v[{160+4*s}:{163+4*s}], v{32+s%4} offset:{3072+256*(s//4)}')
        if s % 3 == 2: a('s_waitcnt lgkmcnt(6)')
    a('s_add_u32 s42, s41, 4096\ns_add_u32 s43, s41, 8192')
    wait_pre(a, c, 44)
    a('s_waitcnt lgkmcnt(0)')
    stamp(a, c, 1)
    a(f's_mov_b32 s30, {c.spin}\nBC_poll:')
    for s in range(12): a(f'buffer_load_dwordx4 v[{64+4*s}:{67+4*s}], v8, s[32:35], s{41+s//4} offen offset:{1024*(s%4)} sc1')
    for s in range(12):
        a(f's_waitcnt vmcnt({11-s})')
        a(mf(24, 112 + 4*s, 64 + 4*s, 24 if s else None)); a(mf(28, 160 + 4*s, 64 + 4*s, 28 if s else None))
    a('''s_nop 6
v_cmp_u_f32 vcc, v24, v24
s_cbranch_vccnz BC_fix
BC_ok:''')
    for r in range(8): a(f'v_mul_f32 v{24+r}, s44, v{24+r}')
    for r in range(4): a(f'v_cvt_pk_bf16_f32 v{24+r}, v{24+2*r}, v{25+2*r}')
    a('buffer_store_dwordx4 v[24:27], v8, s[32:35], s40 offen sc1')
    stamp(a, c, 2)
    if c.stamps: a('s_sub_u32 s69, s3, 1'); stamp_out(a, c, 's69')
    a('s_branch H_roles_done\nBC_fix:\ns_sub_u32 s30, s30, 1\ns_cbranch_scc1 BC_ok\ns_and_b32 s25, s30, 63\ns_cbranch_scc1 BC_poll')
    maxu(a, 5, range(64, 112))
    a('v_cmp_eq_u32 vcc, -1, v5\ns_cbranch_vccnz BC_poll\ns_branch BC_ok')

def helper(a, c):
    a('''s_load_dwordx16 s[36:51], s[0:1], 24
s_load_dwordx4 s[52:55], s[0:1], 88
s_load_dwordx2 s[4:5], s[0:1], 0
v_and_b32 v1, 15, v0
v_bfe_u32 v2, v0, 4, 2
v_and_b32 v3, 63, v0
v_lshlrev_b32 v8, 4, v3
v_lshrrev_b32 v4, 2, v3
v_mul_u32_u24 v10, 768, v4
v_and_b32 v4, 3, v3
v_lshl_add_u32 v10, v4, 4, v10''')
    for r in range(4): a(f'v_mov_b32 v{20+r}, -1')
    a('s_waitcnt lgkmcnt(0)')
    for d, s, n in ((32,54,'ws'),(8,4,'q'),(92,40,'wq'),(88,52,'dbg'),(96,42,'wkv'),(60,36,'lat_hi'),(64,38,'lat_lo'),(56,44,'wo'),(12,46,'w1'),(16,48,'w2'),(20,50,'out')):
        mksrd(a, d, s, n)
    a(f's_lshr_b32 s36, s2, 3\ns_and_b32 s37, s2, 7\ns_cmp_ge_u32 s2, {B0}\ns_cbranch_scc1 H_bc\ns_cmp_ge_u32 s2, {A0}\ns_cbranch_scc1 H_a')
    role_fill(a, c)
    a('H_a:')
    role_a(a, c)
    a('H_bc:')
    role_bc(a, c)
    a('H_roles_done:\ns_cmp_lg_u32 s3, 7\ns_cbranch_scc1 H_rd')
    wait_pre(a, c, 44, sleep=4)
    a('H_rd:\ns_barrier')
    stamp(a, c, 1)
    a(f'''s_cmp_lg_u32 s3, 7
s_cbranch_scc1 H_nf
s_mul_i32 s6, s2, 12288
s_add_u32 s6, s6, {WS_ML}''')
    for k in range(12):
        a(f'buffer_store_dwordx4 v[20:23], v8, s[32:35], s6 offen offset:{1024*(k%4)} sc1')
        if k % 4 == 3: a('s_add_u32 s6, s6, 4096')
    a(f'''H_nf:
s_cmp_ge_u32 s2, 36
s_cbranch_scc1 H_t2done
s_mul_i32 s38, s2, 5462
s_lshr_b32 s38, s38, 16          ; eb
s_mul_i32 s6, s38, 12
s_sub_u32 s39, s2, s6            ; nb
s_lshl_b32 s41, s39, 6''')
    stage32(a, 56, 41)
    row_addr(a, True)
    a(f'''s_mul_i32 s42, s38, 8
s_add_u32 s42, s42, s3
s_mul_i32 s43, s42, {16*1536}
s_add_u32 s43, s43, 768
s_mul_i32 s47, s3, 12288
s_add_u32 s47, s47, 24576''')
    rows16(a, 96, 43, 47, True)
    a('s_lshr_b32 s6, s3, 1\ns_mul_i32 s6, s6, 24576\ns_add_u32 s6, s6, 24576')
    perm_read_addr(a, 32, 6)
    a(f'''v_lshrrev_b32 v4, 2, v1
v_and_b32 v5, 3, v1
v_lshl_add_u32 v4, v2, 3, v4
v_lshlrev_b32 v4, 6, v4
v_lshl_add_u32 v4, v5, 3, v4
s_and_b32 s44, s3, 1
s_lshl_b32 s6, s44, 5
v_add_u32 v4, s6, v4
s_lshl_b32 s6, s39, 1
s_add_u32 s6, s6, s44
s_lshl_b32 s6, s6, 4
v_add_u32 v5, s6, v1               ; n
v_mul_u32_u24 v7, 683, v5
v_lshrrev_b32 v7, 16, v7           ; rw = n/96
v_mul_u32_u24 v9, 96, v7
v_sub_u32 v5, v5, v9               ; n%96
v_mul_u32_u24 v9, 10923, v5
v_lshrrev_b32 v9, 16, v9           ; i' = (n%96)/6
v_mul_u32_u24 v6, 6, v9
v_sub_u32 v5, v5, v6               ; t
v_mad_u32_u24 v5, v7, 6, v5        ; nt
v_mul_u32_u24 v5, 12288, v5
v_lshl_add_u32 v5, v9, 4, v5
v_lshl_add_u32 v5, v2, 8, v5
s_lshr_b32 s6, s42, 1
s_lshl_b32 s6, s6, 10
s_add_u32 s45, s6, {WS_T2T}
s_waitcnt vmcnt(0)
s_barrier''')
    stamp(a, c, 2)
    if c.stamps: a('s_waitcnt lgkmcnt(0)')
    for s in range(12):
        o = L_W + 2048 * s
        a(f'ds_read_b64_tr_b16 v[{64+4*s}:{65+4*s}], v4 offset:{o}\nds_read_b64_tr_b16 v[{66+4*s}:{67+4*s}], v4 offset:{o+256}')
        a(f'ds_read_b128 v[{112+4*s}:{115+4*s}], v{32+s%4} offset:{256*(s//4)}\nds_read_b128 v[{160+4*s}:{163+4*s}], v{32+s%4} offset:{3072+256*(s//4)}')
        if s % 2: a('s_waitcnt lgkmcnt(6)')
    a('s_waitcnt lgkmcnt(0)')
    for s in range(12):
        a(mf(24, 112 + 4*s, 64 + 4*s, 24 if s else None)); a(mf(28, 160 + 4*s, 64 + 4*s, 28 if s else None))
    a('s_nop 7')
    for r in range(4): a(f'v_cvt_pk_bf16_f32 v{24+r}, v{24+2*r}, v{25+2*r}')
    a('''buffer_store_dwordx4 v[24:27], v5, s[32:35], s45 offen sc1
s_waitcnt vmcnt(0)
s_barrier
s_cmp_lg_u32 s3, 7
s_cbranch_scc1 H_t2done''')
    signal_last(a, c, C_T2, 36, F_T2, 44)
    a('H_t2done:')
    stamp(a, c, 4)
    a('s_cmp_ge_u32 s3, 4\ns_cbranch_scc1 H_wov')
    a('s_and_b32 s6, s3, 1\ns_lshl_b32 s6, s6, 2')
    for j in range(3):
        a(f'''v_add_u32 v4, {64*j}, v3
v_mul_u32_u24 v5, 2731, v4
v_lshrrev_b32 v5, 16, v5
v_mul_u32_u24 v6, 24, v5
v_sub_u32 v6, v4, v6
v_and_b32 v7, 2, v5
v_xor_b32 v6, v6, v7
v_xor_b32 v6, s6, v6
v_lshlrev_b32 v6, 4, v6
v_mul_u32_u24 v5, 3072, v5
v_add_u32 v6, v6, v5
v_subrev_u32 v{11+j}, {1024*j}, v6''')
    a(f'''s_mul_i32 s38, s36, 6
s_add_u32 s38, s38, s3
s_mul_i32 s39, s37, 384
s_mov_b32 s40, 12
H_w1l:
s_cmp_ge_u32 s38, 48
s_cselect_b32 s6, 48, 0
s_sub_u32 s38, s38, s6
s_mul_i32 s6, s38, {8*3072}
s_add_u32 s6, s6, s39
s_mul_i32 m0, s38, 3072
s_add_u32 s38, s38, 4''')
    for j in range(3): a(f'buffer_load_dwordx4 v{11+j}, s[12:15], s6 offen offset:{1024*j} lds')
    a(f's_waitcnt vmcnt({c.w1lag})\ns_sub_u32 s40, s40, 1\ns_cmp_lg_u32 s40, 0\ns_cbranch_scc1 H_w1l\ns_branch H_b3')
    a(f'''H_wov:
s_cmp_eq_u32 s3, 7
s_cbranch_scc1 H_b3
s_mul_i32 s38, s37, 3
s_add_u32 s38, s38, s3
s_sub_u32 s38, s38, 4            ; J = 3 jb + w'
s_cmp_ge_u32 s38, 12
s_cselect_b64 s[48:49], s[64:65], s[60:61]
s_cselect_b32 s6, 12, 0
s_mov_b32 s50, {SZ['lat_hi']}
s_mov_b32 s51, 0x20000
s_sub_u32 s6, s38, s6
s_mul_i32 s6, s6, {32*768}
s_add_u32 s7, s6, {16*768}
v_mul_u32_u24 v4, 768, v1
v_lshl_add_u32 v4, v2, 4, v4''')
    for s in range(12):
        a(f'buffer_load_dwordx4 v[{112+4*s}:{115+4*s}], v4, s[48:51], s6 offen offset:{64*s}')
        a(f'buffer_load_dwordx4 v[{160+4*s}:{163+4*s}], v4, s[48:51], s7 offen offset:{64*s}')
    a(f'''s_mul_i32 s39, s36, 36864
s_add_u32 s39, s39, {WS_T2T}
s_lshr_b32 s6, s38, 2
s_mul_i32 s6, s6, 24
s_mul_i32 s7, s36, 3
s_add_u32 s6, s6, s7
s_lshl_b32 s6, s6, 2
s_and_b32 s7, s38, 3
s_add_u32 s6, s6, s7
s_lshl_b32 s40, s6, 10
s_add_u32 s40, s40, {WS_WOV}
s_mov_b32 s41, 3''')
    wait_flag(a, c, F_T2, 44, 4)
    stamp(a, c, 5)
    BB = (16, 64, 208)
    for t in range(3):
        for s in range(12):
            a(f'buffer_load_dwordx4 v[{BB[t]+4*s}:{BB[t]+4*s+3}], v8, s[32:35], s39 offen offset:{1024*(s%4)} sc1')
            if s % 4 == 3: a('s_add_u32 s39, s39, 4096')
    for t in range(3):
        a(f's_waitcnt vmcnt({24-12*t+t})')
        for s in range(12):
            a(mf(4, 112 + 4*s, BB[t] + 4*s, 4 if s else None)); a(mf(12, 160 + 4*s, BB[t] + 4*s, 12 if s else None))
        a('s_nop 7')
        for r in range(2): a(f'v_cvt_pk_bf16_f32 v{BB[t]+r}, v{4+2*r}, v{5+2*r}')
        for r in range(2): a(f'v_cvt_pk_bf16_f32 v{BB[t]+2+r}, v{12+2*r}, v{13+2*r}')
        a(f'buffer_store_dwordx4 v[{BB[t]}:{BB[t]+3}], v8, s[32:35], s40 offen sc1\ns_add_u32 s40, s40, 4096')
    stamp(a, c, 6)
    a('H_b3:\ns_waitcnt vmcnt(0)')
    stamp(a, c, 7)
    if c.stamps:
        a('s_cmp_lt_u32 s2, 36\ns_cbranch_scc0 H_nst\ns_cmp_eq_u32 s3, 5\ns_cbranch_scc0 H_nst1'); stamp_out(a, c, 2)
        a('H_nst1:\ns_cmp_eq_u32 s3, 1\ns_cbranch_scc0 H_nst'); stamp_out(a, c, 3); a('H_nst:')
    a('''s_barrier
s_cmp_lg_u32 s3, 7
s_cbranch_scc1 H_nsig''')
    signal_last(a, c, C_WOV, NHLP, F_GO, 44)
    a('H_nsig:')
    stamp(a, c, 3)
    a('''s_waitcnt lgkmcnt(0)
s_cmp_ge_u32 s3, 4
s_cbranch_scc1 H_now1
v_lshrrev_b32 v4, 2, v1
v_lshl_add_u32 v6, v2, 3, v4
v_mul_u32_u24 v6, 384, v6
v_and_b32 v5, 3, v1
v_lshl_add_u32 v6, v5, 3, v6
v_lshrrev_b32 v4, 1, v4
v_and_b32 v5, 1, v2
v_lshl_add_u32 v4, v5, 1, v4
s_mul_i32 s6, s3, 3''')
    for t in range(3): a(f'v_xor_b32 v5, s6, v4\nv_lshl_add_u32 v{32+t}, v5, 5, v6\ns_add_u32 s6, s6, 1')
    for s in range(12):
        for t in range(3):
            if s and s % 4 == 0: a(f'v_add_u32 v{32+t}, {4*32*384}, v{32+t}')
            d = HWT + 48 * t + 4 * s
            off = (s % 4) * 32 * 384
            a(f'ds_read_b64_tr_b16 v[{d}:{d+1}], v{32+t} offset:{off}\nds_read_b64_tr_b16 v[{d+2}:{d+3}], v{32+t} offset:{off+4*384}')
        a('s_waitcnt lgkmcnt(6)')
    a(f'''s_waitcnt lgkmcnt(0)
H_now1:''')
    row_addr(a, False)
    a(f'''s_mul_i32 s38, s36, 6
s_add_u32 s38, s38, s3
s_lshl_b32 s6, s38, 6
s_and_b32 s6, s6, 128
v_xor_b32 v{SW}, s6, v{SW}
v_xor_b32 v{SW+1}, s6, v{SW+1}
v_xor_b32 v{SW+2}, s6, v{SW+2}
s_barrier
s_mul_i32 s39, s37, {192*768}
s_mov_b32 s40, 6
H_w2l:
s_cmp_ge_u32 s38, 48
s_cselect_b32 s6, 48, 0
s_sub_u32 s38, s38, s6
s_mul_i32 s7, s38, 3072
s_add_u32 s6, s7, s39
s_mov_b32 m0, s7
s_add_u32 s38, s38, 8''')
    for j in range(3): a(f'buffer_load_dwordx4 v{SW+j}, s[16:19], s6 offen offset:{1024*j} lds')
    a('''s_sub_u32 s40, s40, 1
s_cmp_lg_u32 s40, 0
s_cbranch_scc1 H_w2l
s_waitcnt vmcnt(0)
s_barrier
s_cmp_lt_u32 s3, 4
s_cbranch_scc1 H_m1''')
    mlp2(a, c)
    a('H_m1:')
    mlp1(a, c)

def mlp1(a, c):
    CS = 16; C0 = 24; C1 = 28; SEL = 32; LB = 48; HF = 48; D0 = 96; D1 = 100
    c1 = -2 * 0.7978845608028654 * LOG2E; c2 = c1 * 0.044715
    for r in range(4): a(f'v_mov_b32 v{20+r}, 0x3f803f80')
    a(f'''s_lshl_b32 s38, s36, 2
s_add_u32 s38, s38, s3              ; q
v_lshrrev_b32 v4, 1, v2
v_lshlrev_b32 v4, 8, v4
v_lshl_add_u32 v4, v1, 4, v4
v_and_b32 v5, 1, v2
v_lshl_add_u32 v4, v5, 3, v4        ; (g>>1)*256 + n*16 + (g&1)*8
v_and_b32 v6, 0xff, v4
s_mul_i32 s6, s38, 768
buffer_load_dwordx2 v[{LB}:{LB+1}], v4, s[8:11], s6 offen
buffer_load_dwordx2 v[{LB+2}:{LB+3}], v6, s[8:11], s6 offen offset:512
s_mul_i32 s6, s3, {HN_ST}
v_add_u32 v12, s6, v4               ; h write
v_mul_u32_u24 v9, 768, v2
v_lshl_add_u32 v9, v1, 4, v9        ; gather''')
    for s in range(12):
        for t in range(3): a(mf(64 + 4*t, 20, HWT + 48*t + 4*s, 64 + 4*t if s else None))
    a(f'''v_and_b32 v4, 1, v1
v_lshlrev_b32 v4, 4, v4
v_mov_b32 v5, 0x3f80
v_lshlrev_b32 v5, v4, v5
v_lshrrev_b32 v6, 1, v1''')
    for r in range(4):
        a(f'v_cmp_eq_u32 vcc, {r}, v6\ns_nop 1\nv_cndmask_b32 v{SEL+r}, 0, v5, vcc\nv_cmp_eq_u32 vcc, {r+4}, v6\ns_nop 1\nv_cndmask_b32 v{SEL+4+r}, 0, v5, vcc')
    for t in range(3): a(f'v_mov_b32 v{CS+t}, v{64+4*t}')
    a(f'''v_lshrrev_b32 v4, 2, v1
v_mul_u32_u24 v14, {HN_ST}, v4
v_lshl_add_u32 v14, v2, 4, v14
v_mul_u32_u24 v15, {G_ST}, v2
v_lshl_add_u32 v15, v1, 1, v15
s_mul_i32 s6, s3, 96
s_add_u32 s6, s6, {L_G}
v_add_u32 v15, s6, v15              ; G write
v_lshlrev_b32 v13, 3, v2
v_add_u32 v13, {L_ST}, v13
v_mov_b32 v19, {f2u(c1)}
s_mov_b32 s27, {f2u(c2)}
s_mul_i32 s46, s38, {12*768}
s_add_u32 s46, s46, {WS_HP}
s_add_u32 s47, s46, 3072
s_add_u32 s48, s46, 6144
s_mov_b32 s41, {WS_ML}
v_mul_u32_u24 v104, {HN_ST}, v2
v_lshl_add_u32 v104, v1, 1, v104
s_mul_i32 s6, s37, 96
v_add_u32 v104, s6, v104
v_mul_u32_u24 v105, 768, v2
v_lshl_add_u32 v105, v1, 1, v105
s_mul_i32 s42, s36, 3072
s_add_u32 s42, s42, s6
v_mul_u32_u24 v106, 12, v3
v_and_b32 v107, 7, v3
v_lshlrev_b32 v107, 9, v107
s_mul_i32 s43, s2, 6144
s_add_u32 s43, s43, {WS_OP}
s_add_u32 s44, s43, 3072
s_waitcnt vmcnt(0)''')
    for k in range(4): a(f'v_lshlrev_b32 v{C0+2*k}, 16, v{LB+k}\nv_and_b32 v{C0+2*k+1}, 0xffff0000, v{LB+k}')
    wait_flag(a, c, F_GO, 68, 8)
    a(f's_barrier\ns_mov_b32 s45, {1 if c.dry else 0}')
    stamp(a, c, 4)
    a('M_again:\ns_cmp_lg_u32 s45, 0\ns_cbranch_scc1 M_start')
    a(f'''s_mov_b32 s30, {c.spin}
M_gate:
buffer_load_dword v4, v107, s[32:35], s41 offen sc1
s_sub_u32 s30, s30, 1
s_cbranch_scc1 M_start
s_waitcnt vmcnt(0)
v_cmp_ne_u32 vcc, -1, v4
s_cbranch_vccnz M_start
s_sleep 8
s_branch M_gate
M_start:
s_mov_b32 s30, {c.spin}
M_poll:''')
    order = [(sg, cg) for cg in range(3) for sg in range(3)]
    for k, (sg, cg) in enumerate(order):
        a(f'buffer_load_dwordx4 v[{LB+4*k}:{LB+4*k+3}], v9, s[32:35], s{46+sg} offen offset:{256*cg} sc1')
    for k, (sg, cg) in enumerate(order):
        D, C = (D0, C0) if cg < 2 else (D1, C1)
        a(f's_waitcnt vmcnt({8-k})')
        a(mf(D, SEL + (4 if cg == 1 else 0), LB + 4*k, C if k in (0, 6) else D))
    a(f'''s_nop 5
v_cvt_pk_bf16_f32 v20, v{D0}, v{D0+1}
v_cvt_pk_bf16_f32 v21, v{D0+2}, v{D0+3}
v_cmp_u_f32 vcc, v{D0}, v{D1}
v_cvt_pk_bf16_f32 v22, v{D1}, v{D1+1}
v_cvt_pk_bf16_f32 v23, v{D1+2}, v{D1+3}
s_cbranch_vccnz M_fix
M_ok:
ds_write_b64 v12, v[20:21]
s_mov_b64 exec, 0xffffffff
ds_write_b64 v12, v[22:23] offset:512
s_mov_b64 exec, -1''')
    stamp(a, c, 5)
    a('s_waitcnt lgkmcnt(0)\ns_barrier')
    for s in range(12): a(f'ds_read_b128 v[{HF+4*s}:{HF+4*s+3}], v14 offset:{64*s}')
    DG = (96, 100, 108)
    for s in range(12):
        if s < 8: a(f's_waitcnt lgkmcnt({11-s})')
        if s == 8: a('s_waitcnt lgkmcnt(0)\ns_barrier\nds_read_b64 v[4:5], v13')
        for t in range(3): a(mf(DG[t], HF + 4*s, HWT + 48*t + 4*s, DG[t] if s else None))
    a('s_waitcnt lgkmcnt(0)')
    for t in range(3): a(f'v_mul_f32 v{20+t}, v5, v{CS+t}')
    a('s_nop 1')
    for t in range(3): a(f'v_fma_f32 v{20+t}, v{DG[t]}, v4, -v{20+t}')
    for t in range(3): a(f'v_mul_f32 v{LB+t}, v{20+t}, v{20+t}')
    for t in range(3): a(f'v_fma_f32 v{LB+t}, v{LB+t}, s27, v19')
    for t in range(3): a(f'v_mul_f32 v{LB+t}, v{LB+t}, v{20+t}')
    for t in range(3): a(f'v_exp_f32 v{LB+t}, v{LB+t}')
    for t in range(3): a(f'v_add_f32 v{LB+t}, 1.0, v{LB+t}')
    for t in range(3): a(f'v_rcp_f32 v{LB+t}, v{LB+t}')
    for t in range(3): a(f'v_mul_f32 v{20+t}, v{20+t}, v{LB+t}')
    a('''v_cvt_pk_bf16_f32 v20, v20, v21
v_cvt_pk_bf16_f32 v22, v22, v22
ds_write_b16 v15, v20
ds_write_b16_d16_hi v15, v20 offset:32
ds_write_b16 v15, v22 offset:64
s_waitcnt lgkmcnt(0)
s_barrier
s_cmp_lg_u32 s3, 0
s_cbranch_scc1 M_end''')
    stamp(a, c, 6)
    a(f'''ds_read_u16 v20, v104
ds_read_u16 v21, v104 offset:64
ds_read_u16 v22, v104 offset:32
s_mov_b32 s30, {c.spin}
s_waitcnt lgkmcnt(0)
v_lshlrev_b32 v20, 16, v20
v_lshlrev_b32 v21, 16, v21
v_lshlrev_b32 v22, 16, v22
F_poll:''')
    for k in range(8): a(f'buffer_load_dwordx3 v[{LB+4*k}:{LB+4*k+2}], v106, s[32:35], s{43+k//4} offen offset:{768*(k%4)} sc1')
    for k in range(8):
        a(f's_waitcnt vmcnt({7-k})')
        for r in range(3): a(f'v_add_f32 v{96+r}, v{96+r if k else 20+r}, v{LB+4*k+r}')
    a('''v_add_f32 v4, v96, v97
v_cmp_u_f32 vcc, v4, v98
v_cvt_pk_bf16_f32 v4, v96, v98
v_cvt_pk_bf16_f32 v5, v97, v97
s_cbranch_vccnz F_fix
F_ok:
s_cmp_lg_u32 s45, 0
s_cbranch_scc1 M_end
buffer_store_short v4, v105, s[20:23], s42 offen
buffer_store_short_d16_hi v4, v105, s[20:23], s42 offen offset:32
buffer_store_short v5, v105, s[20:23], s42 offen offset:64''')
    if c.stamps:
        a('s_waitcnt vmcnt(0)'); stamp(a, c, 7); stamp_out(a, c, 0)
    a('''M_end:
s_cmp_lg_u32 s45, 0
s_mov_b32 s45, 0
s_cbranch_scc0 K_done
s_barrier
s_branch M_again
M_fix:
s_cmp_lg_u32 s45, 0
s_cbranch_scc1 M_ok
s_sub_u32 s30, s30, 1
s_cbranch_scc1 M_ok
s_and_b32 s25, s30, 63
s_cbranch_scc1 M_poll''')
    maxu(a, 4, range(LB, LB + 36))
    a('''v_cmp_eq_u32 vcc, -1, v4
s_cbranch_vccnz M_poll
s_branch M_ok
F_fix:
s_cmp_lg_u32 s45, 0
s_cbranch_scc1 F_ok
s_sub_u32 s30, s30, 1
s_cbranch_scc1 F_ok
s_and_b32 s25, s30, 63
s_cbranch_scc1 F_poll''')
    maxu(a, 6, [LB + 4*k + r for k in range(8) for r in range(3)])
    a('v_cmp_eq_u32 vcc, -1, v6\ns_cbranch_vccnz F_poll\ns_branch F_ok')

def mlp2(a, c):
    a('''s_sub_u32 s38, s3, 4
v_lshrrev_b32 v4, 2, v1
v_lshl_add_u32 v6, v2, 3, v4
v_mul_u32_u24 v6, 768, v6
v_and_b32 v5, 3, v1
v_lshl_add_u32 v6, v5, 3, v6
v_and_b32 v5, 1, v2
v_lshl_add_u32 v4, v5, 2, v4
s_mul_i32 s6, s38, 6''')
    for t in range(6): a(f'v_xor_b32 v5, s6, v4\nv_lshl_add_u32 v{32+t}, v5, 5, v6\ns_add_u32 s6, s6, 1')
    for s in range(6):
        for t in range(6):
            if s and s % 2 == 0: a(f'v_add_u32 v{32+t}, {2*32*768}, v{32+t}')
            d = HWT + 24 * t + 4 * s
            off = (s % 2) * 32 * 768
            a(f'ds_read_b64_tr_b16 v[{d}:{d+1}], v{32+t} offset:{off}\nds_read_b64_tr_b16 v[{d+2}:{d+3}], v{32+t} offset:{off+4*768}')
            if t % 3 == 2: a('s_waitcnt lgkmcnt(6)')
    a(f'''v_lshrrev_b32 v4, 2, v1
v_mul_u32_u24 v14, {G_ST}, v4
v_lshl_add_u32 v14, v2, 4, v14
v_add_u32 v14, {L_G}, v14
v_mul_u32_u24 v15, 12, v3
s_mul_i32 s6, s38, {HN_ST}
v_add_u32 v12, s6, v8
s_lshl_b32 s6, s38, 3
s_add_u32 s6, s6, {L_ST}
v_mov_b32 v13, s6
s_lshl_b32 s6, s36, 3
s_lshl_b32 s7, s38, 1
s_add_u32 s6, s6, s7
s_mul_i32 s6, s6, 6144
s_mul_i32 s7, s37, 768
s_add_u32 s6, s6, s7
s_add_u32 s43, s6, {WS_OP}
s_add_u32 s44, s6, {WS_DUMMY + 0x50000}
s_mov_b32 s26, {f2u(1/384)}
s_mov_b32 s45, {1 if c.dry else 0}''')
    for r in range(4): a(f'v_mov_b32 v{20+r}, 0')
    a(f'''s_waitcnt lgkmcnt(0)
s_barrier
N_again:
s_cmp_lg_u32 s45, 0
s_cselect_b32 s40, s44, s43
s_add_u32 s41, s40, 6144
s_barrier
s_mov_b32 exec_hi, 0xffff
ds_read_b128 v[20:23], v12
s_mov_b32 exec_hi, -1
s_waitcnt lgkmcnt(0)''')
    for r in range(4): a(f'v_lshlrev_b32 v{24+2*r}, 16, v{20+r}\nv_and_b32 v{25+2*r}, 0xffff0000, v{20+r}')
    a('v_add_f32 v4, v24, v25\nv_mul_f32 v5, v24, v24\nv_fmac_f32 v5, v25, v25')
    for r in range(2, 8): a(f'v_add_f32 v4, v4, v{24+r}\nv_fmac_f32 v5, v{24+r}, v{24+r}')
    a('s_nop 0')
    row_reduce(a, [4, 5], 'v_add_f32')
    for sw in ('32', '16'):
        a(f'''v_mov_b32 v6, v4
v_mov_b32 v7, v5
s_nop 0
v_permlane{sw}_swap_b32 v6, v4
v_permlane{sw}_swap_b32 v7, v5
s_nop 0
v_add_f32 v4, v4, v6
v_add_f32 v5, v5, v7''')
    a(f'''v_mul_f32 v7, s26, v4
v_mul_f32 v6, v7, v7
v_fma_f32 v5, v5, s26, -v6
v_max_f32 v5, 0, v5
v_add_f32 v5, {f2u(1e-5)}, v5
v_rsq_f32 v6, v5
s_nop 0
v_mul_f32 v7, v7, v6
ds_write_b64 v13, v[6:7]
s_waitcnt lgkmcnt(0)
s_barrier
s_barrier''')
    for s in range(6): a(f'ds_read_b128 v[{32+4*s}:{35+4*s}], v14 offset:{64*s}')
    for half in range(2):
        for s in range(6):
            if half == 0: a(f's_waitcnt lgkmcnt({5-s})')
            for t in range(3 * half, 3 * half + 3):
                a(mf(64 + 4*t, 32 + 4*s, HWT + 24*t + 4*s, 64 + 4*t if s else None))
            if half == 1 and s == 2:
                a('v_mov_b32 v67, v72\nbuffer_store_dwordx3 v[66:68], v15, s[32:35], s40 offen sc1')
    a('''s_nop 7
v_mov_b32 v79, v84
buffer_store_dwordx3 v[78:80], v15, s[32:35], s41 offen sc1
s_cmp_lg_u32 s45, 0
s_mov_b32 s45, 0
s_cbranch_scc0 K_done
s_barrier
s_branch N_again''')

def gen(fn, **kw):
    c = Cfg()
    d = dict(stamps=False, flags='nt', lag=30, la=8, wq=2, xr=9, drop=(), prio=0, thr=24.0, mlpos=11, dry=True, progressive=True,
             spin=1 << 16, adelay=1, filldelay=3, godelay=12, bell_any=True, wovpace=True, w1lag=3, flpace=0, flfl='sc1', rgate=True, bsleep=0, fake='')
    d.update(kw); c.__dict__.update(d)
    uid[0] = 0
    a = Asm()
    a(f'; @launch grid=(256,1,1) block=(512,1,1) lds={LDS_BYTES}')
    a('.amdgcn_target "amdgcn-amd-amdhsa--gfx950"\n.text')
    a(head(NAME + '_kernel'))
    a('s_cmp_ge_u32 s2, 256\ns_cbranch_scc1 K_done')
    if c.stamps:
        stamp(a, c, 0); a('s_waitcnt lgkmcnt(0)')
        for k in range(1, 8): a(f's_mov_b64 s[{70+2*k}:{71+2*k}], s[70:71]')
    a(f'''v_lshrrev_b32 v1, 6, v0
s_cmp_lt_u32 s2, {NHLP}
v_readfirstlane_b32 s3, v1
s_cbranch_scc1 K_helper
s_load_dwordx4 s[4:7], s[0:1], 8
s_load_dwordx4 s[52:55], s[0:1], 88
s_sub_u32 s36, s2, {NHLP}
s_and_b32 s16, s36, 7
s_mul_i32 s16, s16, 24
s_lshr_b32 s17, s36, 3
s_add_u32 s37, s16, s17
s_lshr_b32 s38, s37, 4
s_and_b32 s39, s37, 15
s_waitcnt lgkmcnt(0)''')
    for d_, s, n in ((8,4,'hi'),(12,6,'lo'),(32,54,'ws'),(88,52,'dbg')): mksrd(a, d_, s, n)
    a('''s_cmp_lt_u32 s3, 4
s_cbranch_scc1 K_compute
s_sub_u32 s3, s3, 4
s_cmp_lg_u32 s3, 0
s_cbranch_scc1 K_service''')
    loader(a, c)
    a(f'v_lshlrev_b32 v8, 4, v2\nv_mov_b32 v19, {L_CTL}\ns_branch S_go\nK_service:')
    service(a, c)
    rstage(a, c)
    a('K_compute:')
    compute(a, c)
    a('K_helper:')
    helper(a, c)
    a('K_done:\ns_endpgm')
    a('.section .rodata,"a"\n.p2align 6'); a(kd(NAME + '_kernel', 256, 102))
    open(fn, 'w').write(a.text())
if __name__ == '__main__':
    gen('f.s'); gen('f_st.s', stamps=True)
    gen('y0.s', stamps=True, lag=36)
    gen('y1.s', stamps=True, lag=42)
    gen('y2.s', stamps=True, wovpace=False)
    gen('y3.s', stamps=True, dry=False)
    gen('y4.s', stamps=True, flags='')
```

```python
import sys
from asmlib import *
import gen_f
def mk(src, fn, A, B, mult=1):
    t = open(src).read()
    first, rest = t.split('\n', 1)
    rest = rest.replace(NAME + '_kernel', 'fused_kernel')
    hdr = '; @launch kernel=fused_kernel grid=(256,1,1) block=(512,1,1) lds=163840\n; @launch kernel=probe_kernel grid=(1,1,1) block=(64,1,1) lds=0\n'
    ad = lambda x: gen_f.WS_STAMP + (x[0] * 4 + x[1]) * 64 + x[2] * 8
    code = head('probe_kernel') + f'''
s_cmp_ge_u32 s2, 1
s_cbranch_scc1 PB_done
s_load_dwordx2 s[4:5], s[0:1], 96
s_waitcnt lgkmcnt(0)
s_add_u32 s6, s4, {ad(A)}
s_addc_u32 s7, s5, 0
s_add_u32 s12, s4, {ad(B)}
s_addc_u32 s13, s5, 0
s_load_dword s8, s[6:7], 0
s_load_dword s9, s[12:13], 0
s_memrealtime s[10:11]
s_waitcnt lgkmcnt(0)
s_sub_u32 s8, s9, s8
s_mul_i32 s8, s8, {mult}
s_min_u32 s8, s8, 100000
PB_l:
s_memrealtime s[14:15]
s_waitcnt lgkmcnt(0)
s_sub_u32 s14, s14, s10
s_cmp_lt_u32 s14, s8
s_cbranch_scc1 PB_l
PB_done:
s_endpgm
'''
    rest = rest.replace('.section .rodata,"a"', code + '.section .rodata,"a"\n.p2align 6\n' + kd('probe_kernel', 8, 32))
    open(fn, 'w').write(hdr + rest)
if __name__ == '__main__':
    gen_f.gen('ts.s', dry=False, wovpace=False, lag=36, stamps=True)
    t0 = (0, 0, 0)
    for i, B in enumerate([(0,0,0), (0,0,7), (100,0,1), (100,1,2), (10,1,2), (255,0,0)]):
        mk('ts.s', f'q{i}.s', t0, B)
```

```python
from asmlib import *
from gen_base import f2u, allreduce_g
NEGM = 0; SL = 4; S0 = 8; S1 = 12; X = 16; PLO = 24; T = 26; L = 28; CA = 29; WA = 30; XW = 31; XR = 32
BQH = 33; BQL = 34; BPH = 35; BPL = 36; XT = 37; LF = 40; RING = 64; RA = 112; ACC = 160
THR = 24.0
class Q:
    def __init__(s, a, init=()): s.a = a; s.q = list(init)
    def op(s, text, tag):
        if len(s.q) >= 15: s.wait_n(10)
        s.a(text); s.q.append(tag)
    def wait_n(s, n):
        if len(s.q) > n: s.a(f's_waitcnt lgkmcnt({n})'); s.q = s.q[len(s.q) - n:] if n else []
    def need(s, *tags):
        idx = max([i for i, t in enumerate(s.q) if t in tags], default=-1)
        if idx >= 0: s.wait_n(len(s.q) - 1 - idx)
qk = [('lo', s) for s in range(6)]
for s in range(6): qk += [('h0', s), ('h1', s)]
def quad(j): return RING + 4 * (j % 12)
def rd_qk(q, j):
    kind, s = qk[j]; f = quad(j)
    if kind == 'lo': ad = BQL if s % 2 == 0 else XT
    else: ad = BQH if s % 2 == 0 else XT + 1
    imm = 256 * (s // 2) + (12288 if kind == 'h1' else 0)
    q.op(f'ds_read_b128 v[{f}:{f+3}], v{ad} offset:{imm}', f'q{j}')
def mm_qk(a, j):
    kind, s = qk[j]; f = quad(j)
    if kind == 'lo': D, C, B = SL, (NEGM if s == 0 else SL), RA + 24 + 4 * s
    else:
        D = S0 if kind == 'h0' else S1
        C = SL if s == 0 else D; B = RA + 4 * s
    a(f'v_mfma_f32_16x16x32_bf16 v[{D}:{D+3}], v[{f}:{f+3}], v[{B}:{B+3}], v[{C}:{C+3}]')
def pv_ad(base, t): return base if t % 4 == 0 else XT + t % 4 - 1
def rd_h(q, t):
    f = quad(t); ad = pv_ad(BPH, t); imm = 256 * (t // 4)
    q.op(f'ds_read_b64_tr_b16 v[{f}:{f+1}], v{ad} offset:{imm}', f'h{t}a')
    q.op(f'ds_read_b64_tr_b16 v[{f+2}:{f+3}], v{ad} offset:{imm+12288}', f'h{t}')
def rd_l(q, t):
    f = LF + 2 * t
    q.op(f'ds_read_b64_tr_b16 v[{f}:{f+1}], v{pv_ad(BPL, t)} offset:{256*(t//4)}', f'l{t}')
def mm_h(a, t):
    f = quad(t); D = ACC + 4 * t
    a(f'v_mfma_f32_16x16x32_bf16 v[{D}:{D+3}], v[{f}:{f+3}], v[{SL}:{SL+3}], v[{D}:{D+3}]')
def mm_l(a, t):
    f = LF + 2 * t; D = ACC + 48 + 4 * t
    a(f'v_mfma_f32_16x16x16_bf16 v[{D}:{D+3}], v[{f}:{f+1}], v[{PLO}:{PLO+1}], v[{D}:{D+3}]')
def xors(base): return [f'v_xor_b32 v{XT+k-1}, {k << 5}, v{base}' for k in range(1, 4)]

def setup(a, L_XCH, L_CTL):
    i, g = 64, 65
    a(f'''v_and_b32 v{i}, 15, v0
v_bfe_u32 v{g}, v0, 4, 2
s_lshl_b32 s6, s5, 3
v_and_b32 v66, 7, v{i}
v_lshlrev_b32 v66, 1, v66
v_xor_b32 v66, v66, v{g}
v_xor_b32 v66, s6, v66
v_lshlrev_b32 v66, 4, v66
v_mul_u32_u24 v{BQH}, 768, v{i}
v_add_u32 v{BQH}, v{BQH}, v66
v_lshrrev_b32 v67, 1, v{i}
v_lshlrev_b32 v66, 1, v67
v_xor_b32 v66, v66, v{g}
v_xor_b32 v66, s6, v66
v_lshlrev_b32 v66, 4, v66
v_mul_u32_u24 v{BQL}, 768, v67
v_add_u32 v{BQL}, v{BQL}, v66
v_add_u32 v{BQL}, 24576, v{BQL}
v_lshrrev_b32 v67, 2, v{i}
v_and_b32 v68, 3, v{i}
v_lshl_add_u32 v69, v{g}, 2, v67
v_and_b32 v66, 7, v69
v_lshlrev_b32 v66, 1, v66
v_lshrrev_b32 v70, 1, v68
v_xor_b32 v66, v66, v70
v_xor_b32 v66, s6, v66
v_lshlrev_b32 v66, 4, v66
v_and_b32 v71, 1, v68
v_lshl_add_u32 v66, v71, 3, v66
v_mul_u32_u24 v{BPH}, 768, v69
v_add_u32 v{BPH}, v{BPH}, v66
v_lshrrev_b32 v67, 1, v67
v_lshl_add_u32 v69, v{g}, 1, v67
v_lshlrev_b32 v66, 1, v69
v_xor_b32 v66, v66, v70
v_xor_b32 v66, s6, v66
v_lshlrev_b32 v66, 4, v66
v_lshl_add_u32 v66, v71, 3, v66
v_mul_u32_u24 v{BPL}, 768, v69
v_add_u32 v{BPL}, v{BPL}, v66
v_add_u32 v{BPL}, 24576, v{BPL}
v_and_b32 v66, 63, v0
v_lshlrev_b32 v66, 4, v66
s_lshl_b32 s6, s3, 11
s_add_u32 s6, s6, {L_XCH}
v_add_u32 v{XW}, s6, v66
s_xor_b32 s7, s3, 2
s_lshl_b32 s6, s7, 11
s_add_u32 s6, s6, {L_XCH}
v_add_u32 v{XR}, s6, v66
s_lshl_b32 s6, s3, 4
s_add_u32 s6, s6, {L_CTL}
v_mov_b32 v{CA}, s6
s_lshl_b32 s6, s7, 4
s_add_u32 s6, s6, {L_CTL}
v_mov_b32 v{WA}, s6
v_xor_b32 v{XT}, 64, v{BQL}
v_xor_b32 v{XT+1}, 64, v{BQH}''')
    for r in list(range(ACC, ACC + 96)) + list(range(LF, LF + 24)) + [PLO, PLO + 1, L, 0, 1, 2, 3]: a(f'v_mov_b32 v{r}, 0')
    a('''s_mov_b32 s21, -1.0
s_mov_b32 s22, 0xff800000
s_mov_b32 s20, 0
s_mov_b32 s23, 1''')

def loop(a, c, NU, NS, SLOT, SPIN, exit_label):
    LA = c.la
    assert LA >= 8
    if c.stamps: a('s_mov_b64 s[64:65], 0')
    a0 = a
    def a(t):
        for l in t.split('\n'):
            if not any(k in l for k in c.drop): a0(l)
    a(f's_mov_b32 s26, {SLOT}\ns_mov_b32 s27, {(-(NS-1)*SLOT) & 0xffffffff}')
    if c.prio: a('s_cmp_eq_u32 s4, 0\ns_cbranch_scc1 C_spin\ns_setprio 1')
    a('s_branch C_spin\n.p2align 6\nC_top:')
    q = Q(a, [f'q{j}' for j in range(6)])
    hx = xors(BPH); lx = xors(BPL)
    nxt = 6
    for j in range(18):
        if j % c.wq == 0: q.need(*[f'q{k}' for k in range(j, min(18, j + c.wq))])
        mm_qk(a, j)
        n = 2 if j < LA - 6 else 1
        for _ in range(n):
            if nxt < 18: rd_qk(q, nxt); nxt += 1
        if j == 10: a(hx[0]); a(hx[1])
        if j == 11: a(hx[2]); a(f'v_mov_b32 v{T}, s23')
        if j >= 12: rd_h(q, j - 6)
    for b in range(12):
        mm_l(a, b)
        if b == 0: rd_h(q, 0)
        if b == 1: rd_h(q, 1)
        if b == 2: q.op(f'ds_write_b128 v{XW}, v[{S0}:{S0+3}]', 'w'); a(f's_add_u32 s20, s20, 1\ns_cmp_eq_u32 s20, {NS}')
        if b == 3: q.op(f'ds_write_b128 v{XW}, v[{S1}:{S1+3}] offset:1024', 'w'); a('s_cselect_b32 s24, s27, s26\ns_cselect_b32 s20, 0, s20')
        if b == 4: q.op(f'ds_write_b32 v{WA}, v{T} offset:8', 'w'); a(f'v_add_u32 v{T}, 1, v{T}')
        if b == 5: a(f'v_add_u32 v{BQL}, s24, v{BQL}\nv_add_u32 v{BQH}, s24, v{BQH}')
        if b == c.xr:
            q.op(f'ds_read_b32 v{T+1}, v{CA} offset:8', 'xf')
            q.op(f'ds_read_b128 v[{X}:{X+3}], v{XR}', 'x0')
            q.op(f'ds_read_b128 v[{X+4}:{X+7}], v{XR} offset:1024', 'x1')
        if b >= 8: rd_h(q, b - 6)
    for l in lx: a(l)
    a(f'v_add_u32 v{BPH}, s24, v{BPH}')
    q.need('x0')
    a(f'v_cmp_gt_u32 s[28:29], s23, v{T+1}')
    for r in range(4): a(f'v_add_f32 v{X+r}, v{S0+r}, v{X+r}')
    q.need('x1')
    for r in range(4, 8): a(f'v_add_f32 v{X+r}, v{S0+r}, v{X+r}')
    a('C_back:')
    for r in (0, 4, 1, 5, 2, 6, 3, 7): a(f'v_exp_f32 v{X+r}, v{X+r}')
    PP = LF
    PP = LF + 20
    for r in range(4): a(f'v_add_f32 v{PP+r}, v{X+r}, v{X+4+r}')
    a(f'''v_add_f32 v{PLO}, v{PP}, v{PP+1}
v_add_f32 v{PLO+1}, v{PP+2}, v{PP+3}
v_add_f32 v{T+1}, v{PLO}, v{PLO+1}
v_cmp_lt_f32 vcc, s21, v{T+1}''')
    for r in range(4): a(f'v_cvt_pk_bf16_f32 v{SL+r}, v{X+2*r}, v{X+2*r+1}')
    a('s_or_b64 vcc, vcc, s[28:29]\ns_cbranch_scc1 C_fix')
    q.need('h5')
    fill = [f'v_add_f32 v{L}, v{L}, v{T+1}', f'v_cvt_pk_bf16_f32 v{PLO}, v{PP}, v{PP+1}', f'v_cvt_pk_bf16_f32 v{PLO+1}, v{PP+2}, v{PP+3}',
            's_add_u32 s23, s23, 1', f'v_swap_b32 v{XW}, v{XR}', '']
    for t in range(6):
        mm_h(a, t)
        if t == 1: q.op(f'ds_read2_b32 v[{S0}:{S0+1}], v{CA} offset0:0 offset1:3', 'c')
        rd_l(q, 2 * t); rd_l(q, 2 * t + 1)
        if t == 5: q.op(f'ds_write_b32 v{CA}, v{T} offset:4', 'w')
        if fill[t]: a(fill[t])
        if t == 4:
            q.need('c')
            a(f'v_cmp_gt_u32 vcc, s23, v{S0}')
    a(f'v_xor_b32 v{XT}, 64, v{BQL}\ns_cbranch_vccnz C_slow')
    late = [f'v_xor_b32 v{XT+1}, 64, v{BQH}', f'v_add_u32 v{BPL}, s24, v{BPL}', '', '', '', '']
    for t in range(6, 12):
        mm_h(a, t); rd_qk(q, t - 6)
        if late[t - 6]: a(late[t - 6])
    a('s_branch C_top')
    a('C_slow:')
    if c.stamps: a('s_add_u32 s65, s65, 1')
    for t in range(6, 12):
        mm_h(a, t)
        if late[t - 6]: a(late[t - 6])
        if t == 8: a(f'v_cmp_gt_u32 vcc, s23, v{S0+1}')
    a(f's_waitcnt lgkmcnt(0)\ns_cbranch_vccnz {exit_label}')
    a(f'''C_spin:
s_mov_b32 s30, {SPIN}
C_sp1:
ds_read2_b32 v[{S0}:{S0+1}], v{CA} offset0:0 offset1:3
s_sub_u32 s30, s30, 1
s_cbranch_scc1 {exit_label}
s_waitcnt lgkmcnt(0)
v_cmp_gt_u32 s[28:29], s23, v{S0+1}
v_cmp_gt_u32 vcc, s23, v{S0}
s_cmp_lg_u64 s[28:29], 0
s_cbranch_scc1 {exit_label}
s_cbranch_vccnz C_sp1''')
    q = Q(a)
    for j in range(6): rd_qk(q, j)
    a('s_branch C_top')
    a('C_fix:')
    if c.stamps: a('s_add_u32 s64, s64, 1')
    a(f'''s_mov_b32 s30, {SPIN}
C_xs1:
ds_read_b32 v{T+1}, v{CA} offset:8
ds_read_b128 v[{X}:{X+3}], v{XR}
ds_read_b128 v[{X+4}:{X+7}], v{XR} offset:1024
s_sub_u32 s30, s30, 1
s_cselect_b32 s25, 0, s23
s_waitcnt lgkmcnt(0)
v_cmp_gt_u32 vcc, s25, v{T+1}
s_cbranch_vccnz C_xs1''')
    for r in range(8): a(f'v_add_f32 v{X+r}, v{S0+r}, v{X+r}')
    a(f'''s_cmp_lg_u64 s[28:29], 0
s_mov_b64 s[28:29], 0
s_cbranch_scc1 C_back
v_max3_f32 v{T+1}, v{X}, v{X+1}, v{X+2}
v_max3_f32 v{T+1}, v{T+1}, v{X+3}, v{X+4}
v_max3_f32 v{T+1}, v{T+1}, v{X+5}, v{X+6}
v_max_f32 v{T+1}, v{T+1}, v{X+7}''')
    D = T + 1
    allreduce_g(a, D, LF + 20, 'v_max_f32')
    a(f'v_max_f32 v{D}, s22, v{D}\ns_mov_b32 s21, {f2u(2.0**c.thr)}\ns_mov_b32 s22, 0')
    for r in range(8): a(f'v_sub_f32 v{X+r}, v{X+r}, v{D}')
    for r in range(4): a(f'v_fmac_f32 v{NEGM+r}, -0.5, v{D}')
    a(f's_cmp_eq_u32 s23, 1\ns_cbranch_scc1 C_back')
    a(f'v_sub_f32 v{D}, 0, v{D}\nv_exp_f32 v{D}, v{D}\ns_nop 0')
    a(f'v_mul_f32 v{L}, v{L}, v{D}')
    for r in range(96): a(f'v_mul_f32 v{ACC+r}, v{ACC+r}, v{D}')
    a('s_branch C_back')
```

```python
import sys, struct
from asmlib import *
from gen_base import ARG, SZ, f2u, LOG2E, allreduce_g
import comp2 as K
WS_QF = 0x0; WS_TF = 0x6000; WS_AF = 0xC000; WS_T2T = 0x20000; WS_WOV = 0x80000; WS_DUMMY = 0x120000
WS_STAMP = 0x1F0000; WS_ML = 0x200000; WS_HP = 0x218000; WS_OP = 0x260000; WS_PART = 0x300000
NSTR = 192; NHLP = 64; NU = 24; NS = 5; SLOT = 30720
L_XCH = NS * SLOT; L_CTL = L_XCH + 8192; L_GA = L_CTL + 64; L_GO = L_CTL + 68; L_RS = L_CTL + 128
LDS_BYTES = 163840
WS_SIG = 0x18000
C_T2 = WS_SIG; C_WOV = WS_SIG + 0x2000; F_T2 = WS_SIG + 0x4000; F_GO = WS_SIG + 0x6000; F_PRE = 128
A0 = 4; B0 = 28; C0_ = 40
class Cfg: pass
uid = [0]
def lab(p):
    uid[0] += 1; return f'{p}{uid[0]}'

def stamp(a, c, k):
    if c.stamps: a(f's_memrealtime s[{70+2*k}:{71+2*k}]')
def stamp_out(a, c, slot):
    if not c.stamps: return
    a('s_waitcnt lgkmcnt(0)\ns_mov_b64 exec, -1')
    for r in range(16): a(f'v_mov_b32 v{100+r}, s{70+r}')
    a(f'''s_lshl_b32 s68, s2, 2
s_add_u32 s68, s68, {slot}
s_lshl_b32 s68, s68, 6
s_add_u32 s68, s68, {WS_STAMP}
v_mov_b32 v116, s68
s_mov_b64 exec, 1''')
    for r in range(4): a(f'buffer_store_dwordx4 v[{100+4*r}:{103+4*r}], v116, s[32:35], 0 offen offset:{16*r}')
    a('s_mov_b64 exec, -1')
def mksrd(a, d, src, name):
    a(f's_mov_b32 s{d}, s{src}\ns_and_b32 s{d+1}, s{src+1}, 0xffff\ns_mov_b32 s{d+2}, {SZ[name]}\ns_mov_b32 s{d+3}, 0x20000')
def signal_last(a, c, cnt, n, flag, vt):
    l = lab('G')
    a(f'''s_mov_b32 s6, 1
s_atomic_add s6, s[54:55], {cnt} glc
s_waitcnt lgkmcnt(0)
s_cmp_lg_u32 s6, {n-2}
s_cbranch_scc1 {l}
s_mov_b32 s6, 1
s_atomic_add s6, s[54:55], {flag}
s_waitcnt lgkmcnt(0)
{l}:''')
def wait_pre(a, c, vt, sleep=0):
    l = lab('W')
    a(f'''s_mov_b32 s30, {c.spin}
{l}:
buffer_load_dwordx4 v[{vt}:{vt+3}], off, s[88:91], 0 offset:{F_PRE} sc1
s_sub_u32 s30, s30, 1
s_cselect_b32 s25, 0, 1
s_waitcnt vmcnt(0)
v_min3_u32 v{vt}, v{vt}, v{vt+1}, v{vt+2}
v_min_u32 v{vt}, v{vt}, v{vt+3}
v_cmp_gt_u32 vcc, s25, v{vt}''')
    if sleep: a(f's_cbranch_vccz {l}x\ns_sleep {sleep}\ns_branch {l}\n{l}x:')
    else: a(f's_cbranch_vccnz {l}')
def wait_flag(a, c, off, vt, sleep, pre=False):
    if pre: wait_pre(a, c, vt, sleep)
    l = lab('W')
    a(f'''s_mov_b32 s30, {c.spin}
s_mov_b32 s24, {off}
{l}:
buffer_load_dword v{vt}, off, s[32:35], s24 sc1
s_sub_u32 s30, s30, 1
s_cbranch_scc1 {l}x
s_waitcnt vmcnt(0)
v_cmp_eq_u32 vcc, -1, v{vt}
s_cbranch_vccz {l}x
s_sleep {sleep}
s_branch {l}
{l}x:''')
SW = 14
def row_addr(a, wide):
    for j in range(3):
        a(f'''v_add_u32 v4, {64*j}, v3
v_mul_u32_u24 v5, 1366, v4
v_lshrrev_b32 v5, 16, v5
v_lshlrev_b32 v4, 5, v5
v_xor_b32 v{SW+j}, v8, v4''')
        if wide: a(f'v_mul_u32_u24 v5, 768, v5\nv_add_u32 v{SW+j}, v{SW+j}, v5')
        a(f'v_xor_b32 v{SW+3+j}, 128, v{SW+j}')
def rows16(a, srd, soff, ldsreg, wide, nblk=1):
    for b in range(4 * nblk):
        a(f's_add_u32 m0, s{ldsreg}, {3072*b}\ns_nop 0')
        for j in range(3): a(f'buffer_load_dwordx4 v{SW + 3*((b>>1)&1) + j}, s[{srd}:{srd+3}], s{soff} offen offset:{1024*j} lds')
        a(f's_add_u32 s{soff}, s{soff}, {6144 if wide else 3072}')
def perm_read_addr(a, dst, sbase):
    a(f'''v_lshrrev_b32 v4, 2, v1
v_and_b32 v5, 3, v1
v_lshl_add_u32 v4, v4, 3, v5
v_mul_u32_u24 v4, 768, v4
v_and_b32 v5, 7, v1
v_lshlrev_b32 v5, 1, v5
v_xor_b32 v5, v5, v2
v_lshl_add_u32 v4, v5, 4, v4
v_add_u32 v{dst}, s{sbase}, v4''')
    for k in range(1, 4): a(f'v_xor_b32 v{dst+k}, {64*k}, v{dst}')
def wait_lds(a, c, vaddr, off, need, vt, sleep=0):
    l = lab('W')
    a(f'''s_mov_b32 s30, {c.spin}
{l}:
ds_read_b32 v{vt}, v{vaddr} offset:{off}
s_sub_u32 s30, s30, 1
s_cselect_b32 s25, 0, {need}
s_waitcnt lgkmcnt(0)
v_cmp_gt_u32 vcc, s25, v{vt}''')
    if sleep: a(f's_cbranch_vccz {l}x\ns_sleep {sleep}\ns_branch {l}\n{l}x:')
    else: a(f's_cbranch_vccnz {l}')
def maxu(a, dst, regs):
    regs = list(regs)
    a(f'v_max3_u32 v{dst}, v{regs[0]}, v{regs[1]}, v{regs[2]}'); regs = regs[3:]
    while len(regs) >= 2: a(f'v_max3_u32 v{dst}, v{dst}, v{regs[0]}, v{regs[1]}'); regs = regs[2:]
    if regs: a(f'v_max_u32 v{dst}, v{dst}, v{regs[0]}')
def row_reduce(a, regs, op):
    for sh in (8, 4, 2, 1):
        a('s_nop 1' if len(regs) == 1 else 's_nop 0')
        for r in regs: a(f'{op}_dpp v{r}, v{r}, v{r} row_ror:{sh} row_mask:0xf bank_mask:0xf')
def mf(D, A, B, C=None):
    return f'v_mfma_f32_16x16x32_bf16 v[{D}:{D+3}], v[{A}:{A+3}], v[{B}:{B+3}], ' + ('0' if C is None else f'v[{C}:{C+3}]')

def loader(a, c):
    LAG = c.lag
    a('v_and_b32 v2, 63, v0')
    for j in range(6):
        a(f'''v_add_u32 v3, {64*j}, v2
v_mul_u32_u24 v4, 1366, v3
v_lshrrev_b32 v4, 16, v4
v_mul_u32_u24 v5, 48, v4
v_sub_u32 v5, v3, v5
v_lshlrev_b32 v6, 1, v4
v_xor_b32 v5, v5, v6
v_lshlrev_b32 v5, 4, v5
v_mul_u32_u24 v4, 768, v4
v_add_u32 v5, v5, v4
v_subrev_u32 v{10+j}, {1024*(j%3)}, v5''')
    a(f'''v_and_b32 v16, 3, v0
v_lshlrev_b32 v16, 4, v16
v_add_u32 v16, {L_CTL}, v16
s_mov_b32 s16, s36
s_mov_b32 s27, 0
s_mov_b32 s28, 0
s_bfe_u32 s20, s36, 0x30003
s_and_b32 s21, s20, 3
s_lshl_b32 s21, s21, 13
s_lshr_b32 s6, s20, 2
s_lshl_b32 s6, s6, 11
s_add_u32 s21, s21, s6
s_add_u32 s21, s21, {WS_SIG + 0x800}
s_add_u32 s20, s20, {c.nst*NSTR + 8}''')
    def addr():
        a('''s_mul_i32 s18, s16, 2731
s_lshr_b32 s18, s18, 16
s_mul_i32 s19, s18, 24
s_sub_u32 s19, s16, s19
s_mul_i32 s22, s18, 589824
s_mul_i32 s23, s19, 12288
s_add_u32 s22, s22, s23
s_add_u32 s23, s22, 6144
s_add_u32 s17, s22, 294912
s_add_u32 s26, s17, 6144
s_mul_i32 s24, s16, 6144''')
    back = (LAG - 1) // 30
    pos = LAG - 30 * back
    def unit(publish):
        n = 0
        for gi, (so, sr) in enumerate(((24, 12), (22, 8), (17, 8), (23, 8), (26, 8))):
            off = (24576, 0, 12288, 6144, 18432)[gi]
            for h in range(2):
                a(f's_add_u32 m0, s27, {off + 3072*h}\ns_nop 0')
                for j in range(3):
                    a(f'buffer_load_dwordx4 v{10+3*h+j}, s[{sr}:{sr+3}], s{so} offen offset:{1024*j} {c.flags} lds')
                n += 3
                a(f's_waitcnt vmcnt({LAG})')
                if publish and n >= pos and n - 3 < pos:
                    a(f's_sub_u32 s29, s28, {back}\nv_mov_b32 v17, s29\nds_write_b32 v16, v17')
        a(f'''s_add_u32 s16, s16, {NSTR}
s_add_u32 s27, s27, {SLOT}
s_cmp_eq_u32 s27, {NS*SLOT}
s_cselect_b32 s27, 0, s27
s_add_u32 s28, s28, 1''')
    addr(); unit(False)
    a('s_barrier\nLD_loop:')
    addr()
    a(f's_cmp_lt_u32 s28, {NS}\ns_cbranch_scc1 LD_go\ns_sub_u32 s29, s28, {NS-2}')
    wait_lds(a, c, 16, 4, 's29', 17)
    a(f'''LD_go:
s_cmp_lt_u32 s28, {c.nst-1}
s_cbranch_scc1 LD_na
s_mov_b32 s31, 1
s_atomic_add s31, s[54:55], s21 glc
LD_na:''')
    unit(True)
    a(f'''s_cmp_lt_u32 s28, {c.nst}
s_cbranch_scc1 LD_loop
s_waitcnt lgkmcnt(0)
s_lshl_b32 s16, s31, 3
s_add_u32 s16, s16, s20
s_cmp_lt_u32 s16, {NU*NSTR}
s_cbranch_scc1 LD_loop
v_mov_b32 v18, s28
ds_write_b32 v16, v18 offset:12''')
    stamp(a, c, 1)
    if back: a(f's_sub_u32 s29, s28, 1\nv_mov_b32 v17, s29\ns_waitcnt vmcnt(30)\nds_write_b32 v16, v17')
    a(f's_waitcnt vmcnt(0)\nds_write_b32 v16, v18')
    stamp(a, c, 2)

def compute(a, c):
    a(f'''s_and_b32 s4, s3, 1
s_lshr_b32 s5, s3, 1
v_and_b32 v76, 63, v0
v_lshlrev_b32 v76, 4, v76
s_mul_i32 s42, s4, 24576
s_lshl_b32 s7, s5, 11
s_add_u32 s42, s42, s7
s_add_u32 s42, s42, {WS_AF}
s_mul_i32 s40, s4, {8*49152}
s_mul_i32 s7, s5, {16*49152}
s_add_u32 s40, s40, s7
s_lshl_b32 s7, s36, 8
s_add_u32 s40, s40, s7
s_add_u32 s40, s40, {WS_PART}
s_lshl_b32 s41, s4, 8
s_lshl_b32 s7, s36, 9
s_add_u32 s41, s41, s7
s_lshl_b32 s7, s5, 7
s_add_u32 s41, s41, s7
s_add_u32 s41, s41, {WS_ML}''')
    K.setup(a, L_XCH, L_CTL)
    a(f'v_mov_b32 v77, {L_CTL}\ns_barrier')
    wait_lds(a, c, 77, 64, 1, 78, sleep=1)
    stamp(a, c, 5)
    a(f's_mov_b32 s30, {c.spin}\nCA_poll:\ns_mov_b32 s6, s42')
    for k in range(6):
        for j in range(2):
            d = K.RA + 8 * k + 4 * j
            a(f'buffer_load_dwordx4 v[{d}:{d+3}], v76, s[32:35], s6 offen offset:{1024*j} sc1')
        if k < 5: a('s_add_u32 s6, s6, 4096')
    a('s_sub_u32 s30, s30, 1\ns_cselect_b32 s25, 0, -1')
    for h in range(3):
        a(f's_waitcnt vmcnt({8-4*h})')
        maxu(a, 78 + h, range(K.RA + 16 * h, K.RA + 16 * h + 16))
    a('v_max3_u32 v78, v78, v79, v80\nv_cmp_eq_u32 vcc, -1, v78\ns_and_b32 vcc_lo, vcc_lo, s25\ns_and_b32 vcc_hi, vcc_hi, s25\ns_cmp_lg_u64 vcc, 0\ns_cbranch_scc1 CA_poll')
    stamp(a, c, 1)
    if c.stamps: a('s_memtime s[60:61]\ns_waitcnt lgkmcnt(0)')
    K.loop(a, c, NU, NS, SLOT, c.spin, 'C_exit')
    a('C_exit:')
    stamp(a, c, 2)
    if c.stamps: a('s_memtime s[62:63]')
    FA = K.XT; MA = K.XT + 1; X = K.X
    pre = f'''v_mov_b32 v{X+2}, {L_CTL}
v_mbcnt_lo_u32_b32 v{X}, -1, 0
ds_read_b32 v{X+3}, v{X+2} offset:68
v_mbcnt_hi_u32_b32 v{X}, -1, v{X}
s_mov_b32 s6, 49152
v_bfe_u32 v{X+1}, v{X}, 1, 3
v_mul_lo_u32 v{FA}, v{X+1}, s6
v_and_b32 v{X+1}, 1, v{X}
v_lshl_add_u32 v{FA}, v{X+1}, 6, v{FA}
v_and_b32 v{X+1}, 48, v{X}
v_add_u32 v{FA}, v{FA}, v{X+1}
v_lshlrev_b32 v{MA}, 3, v{X}'''.split('\n')
    def cvt(s):
        f = K.RING + 4 * s
        return [f'v_cvt_pk_bf16_f32 v{f+k}, v{K.ACC+8*s+2*k}, v{K.ACC+8*s+2*k+1}' for k in range(4)]
    early = pre + cvt(0) + cvt(1) + cvt(2)
    for t in range(12):
        K.mm_l(a, t)
        for l in early[2*t:2*t+2]: a(l)
    a(f's_waitcnt lgkmcnt(0)\nv_cmp_eq_u32 vcc, 0, v{X+3}\ns_cbranch_vccnz C_nogo\nC_go:')
    for s in range(12):
        f = K.RING + 4 * s
        if s >= 3:
            for l in cvt(s): a(l)
        if s and s % 2 == 0: a(f's_add_u32 s40, s40, {32*49152}')
        a(f'buffer_store_dwordx4 v[{f}:{f+3}], v{FA}, s[32:35], s40 offen offset:{128*(s%2)} {c.flfl}')
        if c.flpace and s >= c.flpace: a(f's_waitcnt vmcnt({c.flpace})')
    stamp(a, c, 3)
    allreduce_g(a, K.L, K.T, 'v_add_f32')
    a(f'''v_mul_f32 v{K.T}, -2.0, v{K.NEGM}
v_mov_b32 v{K.T+1}, v{K.L}
s_mov_b64 exec, 0xffff
s_waitcnt vmcnt(0)
buffer_store_dwordx2 v[{K.T}:{K.T+1}], v{MA}, s[32:35], s41 offen sc1
s_barrier''')
    if c.stamps:
        stamp(a, c, 4)
        a('s_waitcnt lgkmcnt(0)\ns_sub_u32 s84, s62, s60\ns_lshl_b32 s85, s65, 16\ns_or_b32 s85, s85, s64')
        a('s_cmp_lg_u32 s3, 0\ns_cbranch_scc1 K_done'); stamp_out(a, c, 0)
    a('s_endpgm\nC_nogo:')
    wait_lds(a, c, X + 2, 68, 1, X + 3)
    a('s_branch C_go')

RW = 160; RD = 64; RA = 112
def service(a, c):
    a(f'''v_and_b32 v3, 63, v0
v_lshlrev_b32 v8, 4, v3
v_mov_b32 v19, {L_CTL}
s_cmp_lg_u32 s3, 1
s_cbranch_scc1 S_other''')
    for r in range(4): a(f'v_mov_b32 v{20+r}, 0')
    a(f'''v_add_u32 v4, {L_CTL}, v8
ds_write_b128 v4, v[20:23]
ds_write_b128 v4, v[20:23] offset:1024
v_mov_b32 v5, 1
v_mov_b32 v6, 0xff800000
s_mov_b64 exec, 15
ds_write_b32 v4, v5 offset:4
ds_write_b32 v4, v6 offset:12
s_mov_b64 exec, -1
s_waitcnt lgkmcnt(0)
s_barrier''')
    wait_lds(a, c, 19, 0, c.adelay, 6, sleep=2)
    wait_pre(a, c, 24, sleep=2)
    a(f'''v_min_u32 v4, 47, v3
v_lshlrev_b32 v4, 10, v4
s_mov_b32 s6, {WS_AF}
s_mov_b32 s30, {c.spin}
S_bell:
buffer_load_dword v6, v4, s[32:35], s6 offen sc1
s_sub_u32 s30, s30, 1
s_cbranch_scc1 S_rang
s_waitcnt vmcnt(0)''')
    a('v_cmp_ne_u32 vcc, -1, v6\ns_cbranch_vccz S_bell' if c.bell_any else 'v_cmp_eq_u32 vcc, -1, v6\ns_cbranch_vccnz S_bell')
    a('S_rang:\nds_write_b32 v19, v5 offset:64')
    wait_lds(a, c, 19, 0, c.godelay, 6, sleep=8)
    wait_flag(a, c, F_GO, 6, 16, pre=False)
    a('ds_write_b32 v19, v5 offset:68\ns_branch S_wov\nS_other:\ns_barrier\nS_go:')
    wait_lds(a, c, 19, 68, 1, 6, sleep=8)
    a('S_wov:')
    stamp(a, c, 7)
    a(f'''s_lshr_b32 s6, s38, 1
s_mul_i32 s6, s6, {24*4096}
s_mul_i32 s7, s3, {6*4096}
s_add_u32 s6, s6, s7
s_and_b32 s7, s38, 1
s_lshl_b32 s7, s7, 11
s_add_u32 s6, s6, s7
s_add_u32 s6, s6, {WS_WOV}''')
    for k in range(12):
        a(f'buffer_load_dwordx4 v[{RW+4*k}:{RW+4*k+3}], v8, s[32:35], s6 offen offset:{1024*(k%2)} sc1')
        if k % 2: a('s_add_u32 s6, s6, 4096')
        if c.wovpace and k % 4 == 3: a('s_waitcnt vmcnt(4)')

def rstage(a, c):
    PST = 288
    a('''v_and_b32 v1, 15, v0
v_bfe_u32 v2, v0, 4, 2
v_lshrrev_b32 v3, 3, v1
v_mul_u32_u24 v3, 0x0202, v3
v_add_u32 v3, 0x0100, v3
v_and_b32 v4, 1, v1
v_lshlrev_b32 v4, 4, v4
v_lshlrev_b32 v3, v4, v3
v_mov_b32 v5, 0x0c0c0000
v_lshrrev_b32 v5, v4, v5
v_or_b32 v4, v3, v5
v_bfe_u32 v5, v1, 1, 2
v_mov_b32 v6, 0x0c0c0c0c''')
    for r in range(4): a(f'v_cmp_eq_u32 vcc, {r}, v5\ns_nop 1\nv_cndmask_b32 v{20+r}, v6, v4, vcc')
    a(f'''v_lshl_add_u32 v9, v1, 2, v2
v_lshlrev_b32 v9, 9, v9
s_lshr_b32 s6, s39, 3
s_lshl_b32 s6, s6, 8
s_and_b32 s7, s38, 1
s_lshl_b32 s7, s7, 7
s_add_u32 s6, s6, s7
s_and_b32 s7, s39, 7
s_lshl_b32 s7, s7, 4
s_add_u32 s6, s6, s7
s_mul_i32 s7, s3, {48*512}
s_add_u32 s6, s6, s7
s_add_u32 s40, s6, {WS_ML}
s_mul_i32 s6, s37, 49152
s_mul_i32 s7, s3, 12288
s_add_u32 s6, s6, s7
s_add_u32 s41, s6, {WS_PART}
s_add_u32 s42, s41, 4096
s_add_u32 s43, s41, 8192
v_mul_u32_u24 v18, 12, v1
v_mul_u32_u24 v3, {12*768}, v2
v_add_u32 v18, v18, v3
s_mul_i32 s6, s39, 24
s_add_u32 s6, s6, s38
s_mul_i32 s6, s6, 768
s_mul_i32 s7, s3, 192
s_add_u32 s6, s6, s7
s_add_u32 s47, s6, {WS_HP}
s_add_u32 s46, s6, {WS_DUMMY}
s_lshl_b32 s7, s3, 2
s_add_u32 s7, s7, {L_RS}
v_mov_b32 v14, s7
v_and_b32 v3, 1, v2
v_lshlrev_b32 v15, 5, v3
v_add_u32 v15, {L_RS}, v15          ; (M,L) read
s_mul_i32 s7, s3, {PST}
s_add_u32 s7, s7, {L_RS+64}
v_lshl_add_u32 v12, v3, 3, s7
v_and_b32 v4, 3, v1
v_lshl_add_u32 v12, v4, 4, v12
v_lshrrev_b32 v5, 3, v1
v_lshl_add_u32 v12, v5, 6, v12
v_bfe_u32 v5, v1, 2, 1
v_lshl_add_u32 v12, v5, 7, v12
v_mul_u32_u24 v13, {PST}, v4
v_lshl_add_u32 v13, v5, 7, v13
v_lshl_add_u32 v13, v2, 4, v13
v_add_u32 v13, {L_RS+64}, v13
s_mov_b32 s45, 0''')
    for r in range(48): a(f'v_mov_b32 v{RD+r}, 0')
    if c.dry: a('s_cmp_eq_u32 s3, 1\ns_cselect_b32 s45, 0xfff, 0')
    a(f'''R_again:
v_mov_b32 v28, 0xff800000
v_mov_b32 v29, 0
v_mov_b32 v30, 0xff800000
v_mov_b32 v31, 0
s_mov_b32 s44, s45
s_cmp_lg_u32 s45, 0
s_cselect_b32 s31, s46, s47
s_cbranch_scc1 R_start''')
    a('s_barrier')
    a('R_start:')
    stamp(a, c, 3)
    a(f'''s_mov_b32 s30, {c.spin}
R_bell:
s_mov_b32 exec_lo, 0x0fff0fff
s_mov_b32 exec_hi, 0x0fff0fff
buffer_load_dwordx4 v[28:31], v9, s[32:35], s40 offen sc1
s_mov_b64 exec, -1
s_sub_u32 s30, s30, 1
s_cselect_b32 s26, 0xfff, 0
s_waitcnt vmcnt(0)
v_max3_u32 v3, v28, v29, v30
v_max_u32 v3, v3, v31
v_cmp_ne_u32 s[24:25], -1, v3
s_and_b32 s24, s24, s25
s_lshr_b32 s25, s24, 16
s_and_b32 s24, s24, s25
s_and_b32 s24, s24, 0xfff
s_or_b32 s24, s24, s26
s_andn2_b32 s24, s24, s44
s_or_b32 s44, s44, s24
s_or_b32 s25, s24, s45
s_cbranch_scc0 R_bell''')
    for k in range(12):
        a(f's_bitcmp1_b32 s24, {k}\ns_cselect_b64 exec, -1, 0')
        a(f'buffer_load_dwordx4 v[{RD+4*k}:{RD+4*k+3}], v8, s[32:35], s{41+k//4} offen offset:{1024*(k%4)} sc1')
    a('''s_mov_b64 exec, -1
s_cmp_lg_u32 s44, 0xfff
s_cbranch_scc1 R_bell
v_mov_b32 v4, v28
v_mov_b32 v5, v30''')
    def red2(op):
        row_reduce(a, [4, 5], op)
        for sw in ('32', '16'):
            a(f'''v_mov_b32 v6, v4
v_mov_b32 v7, v5
s_nop 0
v_permlane{sw}_swap_b32 v6, v4
v_permlane{sw}_swap_b32 v7, v5
s_nop 0
{op} v4, v4, v6
{op} v5, v5, v7''')
    red2('v_max_f32')
    a('''ds_write2_b32 v14, v4, v5 offset0:0 offset1:8
v_sub_f32 v28, v28, v4
v_sub_f32 v30, v30, v5
v_exp_f32 v28, v28
v_exp_f32 v30, v30
s_nop 0
v_cvt_pk_bf16_f32 v10, v28, v30
v_lshlrev_b32 v4, 16, v10
v_and_b32 v5, 0xffff0000, v10
v_mul_f32 v4, v4, v29
v_mul_f32 v5, v5, v31''')
    red2('v_add_f32')
    a('ds_write2_b32 v14, v4, v5 offset0:4 offset1:12')
    for k in range(12):
        a(f'v_mov_b32_dpp v11, v10 row_newbcast:{k} row_mask:0xf bank_mask:0xf')
        for r in range(4): a(f'v_perm_b32 v{RA+4*k+r}, v11, v11, v{20+r}')
    a('s_waitcnt vmcnt(0)')
    stamp(a, c, 4)
    for k in range(12): a(mf(24, RA + 4*k, RD + 4*k, 24 if k else None))
    a('''s_nop 5
s_mov_b32 exec_lo, 0x0f0f0f0f
s_mov_b32 exec_hi, 0xf0f0f0f0
v_cvt_pk_bf16_f32 v24, v24, v25
v_cvt_pk_bf16_f32 v25, v26, v27
s_cmp_lg_u32 s45, 0
ds_write_b64 v12, v[24:25]
s_mov_b64 exec, -1
s_waitcnt lgkmcnt(0)
s_cbranch_scc1 R_nb2
s_barrier
R_nb2:
ds_read_b128 v[4:7], v15
ds_read_b128 v[36:39], v13
ds_read_b128 v[40:43], v13 offset:64
ds_read_b128 v[28:31], v15 offset:16
s_waitcnt lgkmcnt(3)
v_max3_f32 v3, v4, v5, v6
v_max_f32 v3, v3, v7
s_waitcnt lgkmcnt(0)''')
    fl = [f'v_sub_f32 v{4+r}, v{4+r}, v3' for r in range(4)] + [f'v_exp_f32 v{4+r}, v{4+r}' for r in range(4)] + [
        'v_mul_f32 v3, v4, v28', 'v_fmac_f32 v3, v5, v29', 'v_fmac_f32 v3, v6, v30', 'v_fmac_f32 v3, v7, v31', 'v_rcp_f32 v3, v3', 's_nop 0'] + [f'v_mul_f32 v{4+r}, v{4+r}, v3' for r in range(4)]
    def comb(t):
        D = RD + 4 * t
        return [f'v_mul_f32 v{D}, v4, v{D}'] + [f'v_fmac_f32 v{D}, v{4+r}, v{D+r}' for r in range(1, 4)]
    for t in range(6): fl += comb(t) + ([f'v_cvt_pk_bf16_f32 v{24+t//2}, v{RD+4*t-4}, v{RD+4*t}'] if t % 2 else [])
    for t in range(6):
        for s in range(2):
            a(mf(RD + 4*t, 36 + 4*s, RW + 8*t + 4*s, RD + 4*t if s else None))
            for l in fl[:2]: a(l)
            fl = fl[2:]
    for l in fl: a(l)
    a('''s_mov_b64 exec, 0xffffffff
buffer_store_dwordx3 v[24:26], v18, s[32:35], s31 offen sc1
s_mov_b64 exec, -1
s_cmp_lg_u32 s45, 0
s_mov_b32 s45, 0
s_cbranch_scc1 R_again''')
    if c.stamps:
        stamp(a, c, 5); a('s_waitcnt vmcnt(0)'); stamp(a, c, 6)
        a('s_cmp_gt_u32 s3, 1\ns_cbranch_scc1 K_done\ns_add_u32 s69, s3, 1'); stamp_out(a, c, 's69')
    a('s_endpgm')

HWT = 112
L_W = 0; L_QN = 24576; QN_ST = 800
L_HN = 0; HN_ST = 832; L_G = 4096; G_ST = 448; L_ST = 8192
def stage32(a, srd, scol):
    a(f's_mul_i32 s6, s3, {48*768}\ns_add_u32 s6, s6, s{scol}\ns_mul_i32 s7, s3, {48*64}')
    for k in range(3):
        a(f's_add_u32 m0, s7, {L_W + 1024*k}\ns_nop 0\nbuffer_load_dwordx4 v10, s[{srd}:{srd+3}], s6 offen lds')
        if k < 2: a(f's_add_u32 s6, s6, {16*768}')
def role_a(a, c):
    a(f'''s_sub_u32 s40, s2, {A0}
s_cmp_ge_u32 s40, 12
s_cselect_b32 s38, 1, 0          ; qh
s_mul_i32 s6, s38, 12
s_sub_u32 s39, s40, s6           ; m
s_lshl_b32 s40, s40, 10
s_add_u32 s40, s40, {WS_QF}
s_lshl_b32 s41, s39, 6
v_lshrrev_b32 v4, 5, v3
v_and_b32 v5, 31, v3
v_mul_u32_u24 v6, 768, v4
v_lshl_add_u32 v6, v5, 3, v6
s_lshl_b32 s6, s38, 3
s_add_u32 s6, s6, s3
s_mul_i32 s6, s6, 1536''')
    for k in range(3): a(f'buffer_load_dwordx2 v[{24+2*k}:{25+2*k}], v6, s[8:11], s6 offen offset:{256*k}')
    stage32(a, 92, 41)
    a(f'''v_mul_u32_u24 v7, {QN_ST}, v4
v_lshl_add_u32 v7, v5, 3, v7
s_mul_i32 s6, s3, {2*QN_ST}
s_add_u32 s6, s6, {L_QN}
v_add_u32 v7, s6, v7
s_waitcnt vmcnt(3)''')
    stamp(a, c, 3)
    for k in range(6): a(f'v_lshlrev_b32 v{32+2*k}, 16, v{24+k}\nv_and_b32 v{33+2*k}, 0xffff0000, v{24+k}')
    def red(r):
        row_reduce(a, [r], 'v_add_f32')
        a(f'v_mov_b32 v5, v{r}\ns_nop 1\nv_permlane16_swap_b32 v5, v{r}\ns_nop 0\nv_add_f32 v{r}, v{r}, v5')
    a('v_add_f32 v4, v32, v33')
    for k in range(2, 12): a(f'v_add_f32 v4, v4, v{32+k}')
    red(4)
    a(f'v_mul_f32 v4, {f2u(1/384)}, v4')
    for k in range(12): a(f'v_sub_f32 v{32+k}, v{32+k}, v4')
    a('v_mul_f32 v4, v32, v32')
    for k in range(1, 12): a(f'v_fmac_f32 v4, v{32+k}, v{32+k}')
    red(4)
    a(f'v_mov_b32 v5, {f2u(1e-5)}\nv_fmac_f32 v5, {f2u(1/384)}, v4\nv_rsq_f32 v5, v5\ns_nop 0')
    for k in range(12): a(f'v_mul_f32 v{32+k}, v{32+k}, v5')
    for k in range(6): a(f'v_cvt_pk_bf16_f32 v{24+k}, v{32+2*k}, v{33+2*k}')
    for k in range(3): a(f'ds_write_b64 v7, v[{24+2*k}:{25+2*k}] offset:{256*k}')
    a(f'''v_lshrrev_b32 v4, 2, v1
v_lshl_add_u32 v4, v2, 3, v4
v_lshlrev_b32 v4, 6, v4
v_and_b32 v5, 3, v1
v_lshl_add_u32 v4, v5, 4, v4
s_lshl_b32 s6, s3, 3
v_add_u32 v4, s6, v4
v_mul_u32_u24 v5, {QN_ST}, v1
v_lshl_add_u32 v5, v2, 4, v5
v_add_u32 v5, {L_QN}, v5
s_add_u32 s40, s40, s6
s_cmp_lg_u32 s3, 7
s_cbranch_scc1 A_w0''')
    wait_pre(a, c, 44)
    a('A_w0:')
    stamp(a, c, 4)
    a('''s_waitcnt vmcnt(0) lgkmcnt(0)
s_barrier
s_cmp_ge_u32 s3, 2
s_cbranch_scc1 H_roles_done''')
    stamp(a, c, 1)
    if c.stamps: a('s_waitcnt lgkmcnt(0)')
    q = K.Q(a)
    def rd(s):
        q.op(f'ds_read_b64_tr_b16 v[{64+4*s}:{65+4*s}], v4 offset:{L_W + 2048*s}', 'x')
        q.op(f'ds_read_b64_tr_b16 v[{66+4*s}:{67+4*s}], v4 offset:{L_W + 2048*s + 256}', 'x')
        q.op(f'ds_read_b128 v[{112+4*s}:{115+4*s}], v5 offset:{64*s}', f'k{s}')
    for s in range(4): rd(s)
    for s in range(12):
        q.need(f'k{s}')
        a(mf(24, 64 + 4*s, 112 + 4*s, 24 if s else None))
        if s + 4 < 12: rd(s + 4)
    a('''s_nop 7
v_cvt_pk_bf16_f32 v24, v24, v25
v_cvt_pk_bf16_f32 v25, v26, v27
buffer_store_dwordx2 v[24:25], v8, s[32:35], s40 offen sc1''')
    stamp(a, c, 2)
    if c.stamps: a('s_cmp_lg_u32 s3, 0\ns_cbranch_scc1 H_roles_done'); stamp_out(a, c, 1)
    a('s_branch H_roles_done')
def role_fill(a, c):
    a(f's_mul_i32 s6, s2, 24576\ns_mul_i32 s7, s3, 3072\ns_add_u32 s6, s6, s7')
    for k in range(3): a(f'buffer_store_dwordx4 v[20:23], v8, s[32:35], s6 offen offset:{1024*k} sc1')
    a(f'''s_lshl_b32 s7, s2, 13
s_add_u32 s7, s7, {WS_SIG}
s_cmp_lg_u32 s3, 7
s_cbranch_scc1 RF_1
v_lshlrev_b32 v4, 10, v3
s_mov_b64 exec, 0xff
buffer_store_dword v20, v4, s[32:35], s7 offen sc1
s_mov_b64 exec, -1
RF_1:
s_lshl_b32 s6, s2, 2
s_waitcnt vmcnt(0)
s_barrier
s_cmp_lg_u32 s3, 0
s_cbranch_scc1 H_roles_done
s_mov_b64 exec, 1
buffer_store_dword v20, off, s[88:91], s6 offset:{F_PRE} sc1
s_mov_b64 exec, -1''')
    stamp(a, c, 2)
    stamp_out(a, c, 1)
    a('s_branch H_roles_done')
def role_bc(a, c):
    a(f'''s_cmp_eq_u32 s3, 2
s_cbranch_scc0 BC_c
s_cmp_ge_u32 s2, {B0+24}
s_cbranch_scc1 H_roles_done
s_sub_u32 s6, s2, {B0}
s_cmp_ge_u32 s6, 12
s_cselect_b32 s38, 1, 0
s_mul_i32 s7, s38, 12
s_sub_u32 s39, s6, s7
s_lshl_b32 s40, s6, 10
s_add_u32 s40, s40, {WS_TF}
s_mul_i32 s41, s38, 12288
s_add_u32 s41, s41, {WS_QF}
s_mov_b32 s42, 1536
s_mul_i32 s43, s39, {32*1536}
s_mov_b32 s44, 1.0
s_mov_b64 s[48:49], s[96:97]
s_mov_b32 s50, {SZ['wkv']}
s_branch BC_go
BC_c:
s_sub_u32 s38, s3, 3
s_cmp_ge_u32 s38, 2
s_cbranch_scc1 H_roles_done
s_cmp_lt_u32 s2, 40
s_cbranch_scc1 H_roles_done
s_sub_u32 s39, s2, 40
s_mul_i32 s40, s38, 24
s_add_u32 s40, s40, s39
s_lshl_b32 s40, s40, 10
s_add_u32 s40, s40, {WS_AF}
s_mul_i32 s41, s38, 12288
s_add_u32 s41, s41, {WS_TF}
s_mov_b32 s42, 768
s_cmp_ge_u32 s39, 12
s_cselect_b64 s[48:49], s[64:65], s[60:61]
s_cselect_b32 s6, 12, 0
s_sub_u32 s6, s39, s6
s_mul_i32 s43, s6, {32*768}
s_mov_b32 s44, {f2u(384**-0.5 * LOG2E)}
s_mov_b32 s50, {SZ['lat_hi']}
BC_go:
s_mov_b32 s51, 0x20000
s_mul_i32 s47, s3, 24576
s_cmp_eq_u32 s3, 2
s_cbranch_scc0 BC_n''')
    row_addr(a, True)
    rows16(a, 48, 43, 47, True, nblk=2)
    a('s_branch BC_l\nBC_n:')
    row_addr(a, False)
    rows16(a, 48, 43, 47, False, nblk=2)
    a('BC_l:')
    perm_read_addr(a, 32, 47)
    a('s_waitcnt vmcnt(0)')
    for s in range(12):
        a(f'ds_read_b128 v[{112+4*s}:{115+4*s}], v{32+s%4} offset:{256*(s//4)}\nds_read_b128 v[{160+4*s}:{163+4*s}], v{32+s%4} offset:{3072+256*(s//4)}')
        if s % 3 == 2: a('s_waitcnt lgkmcnt(6)')
    a('s_add_u32 s42, s41, 4096\ns_add_u32 s43, s41, 8192')
    wait_pre(a, c, 44)
    a('s_waitcnt lgkmcnt(0)')
    stamp(a, c, 1)
    a(f's_mov_b32 s30, {c.spin}\nBC_poll:')
    for s in range(12): a(f'buffer_load_dwordx4 v[{64+4*s}:{67+4*s}], v8, s[32:35], s{41+s//4} offen offset:{1024*(s%4)} sc1')
    for s in range(12):
        a(f's_waitcnt vmcnt({11-s})')
        a(mf(24, 112 + 4*s, 64 + 4*s, 24 if s else None)); a(mf(28, 160 + 4*s, 64 + 4*s, 28 if s else None))
    a('''s_nop 6
v_cmp_u_f32 vcc, v24, v24
s_cbranch_vccnz BC_fix
BC_ok:''')
    for r in range(8): a(f'v_mul_f32 v{24+r}, s44, v{24+r}')
    for r in range(4): a(f'v_cvt_pk_bf16_f32 v{24+r}, v{24+2*r}, v{25+2*r}')
    a('buffer_store_dwordx4 v[24:27], v8, s[32:35], s40 offen sc1')
    stamp(a, c, 2)
    if c.stamps: a('s_sub_u32 s69, s3, 1'); stamp_out(a, c, 's69')
    a('s_branch H_roles_done\nBC_fix:\ns_sub_u32 s30, s30, 1\ns_cbranch_scc1 BC_ok\ns_and_b32 s25, s30, 63\ns_cbranch_scc1 BC_poll')
    maxu(a, 5, range(64, 112))
    a('v_cmp_eq_u32 vcc, -1, v5\ns_cbranch_vccnz BC_poll\ns_branch BC_ok')

def helper(a, c):
    a('''s_load_dwordx16 s[36:51], s[0:1], 24
s_load_dwordx4 s[52:55], s[0:1], 88
s_load_dwordx2 s[4:5], s[0:1], 0
v_and_b32 v1, 15, v0
v_bfe_u32 v2, v0, 4, 2
v_and_b32 v3, 63, v0
v_lshlrev_b32 v8, 4, v3
v_lshrrev_b32 v4, 2, v3
v_mul_u32_u24 v10, 768, v4
v_and_b32 v4, 3, v3
v_lshl_add_u32 v10, v4, 4, v10''')
    for r in range(4): a(f'v_mov_b32 v{20+r}, -1')
    a('s_waitcnt lgkmcnt(0)')
    for d, s, n in ((32,54,'ws'),(8,4,'q'),(92,40,'wq'),(88,52,'dbg'),(96,42,'wkv'),(60,36,'lat_hi'),(64,38,'lat_lo'),(56,44,'wo'),(12,46,'w1'),(16,48,'w2'),(20,50,'out')):
        mksrd(a, d, s, n)
    a(f's_lshr_b32 s36, s2, 3\ns_and_b32 s37, s2, 7\ns_cmp_ge_u32 s2, {B0}\ns_cbranch_scc1 H_bc\ns_cmp_ge_u32 s2, {A0}\ns_cbranch_scc1 H_a')
    role_fill(a, c)
    a('H_a:')
    role_a(a, c)
    a('H_bc:')
    role_bc(a, c)
    a('H_roles_done:\ns_cmp_lg_u32 s3, 7\ns_cbranch_scc1 H_rd')
    wait_pre(a, c, 44, sleep=4)
    a('H_rd:\ns_barrier')
    stamp(a, c, 1)
    a(f'''s_cmp_lg_u32 s3, 7
s_cbranch_scc1 H_nf
s_mul_i32 s6, s2, 12288
s_add_u32 s6, s6, {WS_ML}''')
    for k in range(12):
        a(f'buffer_store_dwordx4 v[20:23], v8, s[32:35], s6 offen offset:{1024*(k%4)} sc1')
        if k % 4 == 3: a('s_add_u32 s6, s6, 4096')
    a(f'''H_nf:
s_cmp_ge_u32 s2, 36
s_cbranch_scc1 H_t2done
s_mul_i32 s38, s2, 5462
s_lshr_b32 s38, s38, 16          ; eb
s_mul_i32 s6, s38, 12
s_sub_u32 s39, s2, s6            ; nb
s_lshl_b32 s41, s39, 6''')
    stage32(a, 56, 41)
    row_addr(a, True)
    a(f'''s_mul_i32 s42, s38, 8
s_add_u32 s42, s42, s3
s_mul_i32 s43, s42, {16*1536}
s_add_u32 s43, s43, 768
s_mul_i32 s47, s3, 12288
s_add_u32 s47, s47, 24576''')
    rows16(a, 96, 43, 47, True)
    a('s_lshr_b32 s6, s3, 1\ns_mul_i32 s6, s6, 24576\ns_add_u32 s6, s6, 24576')
    perm_read_addr(a, 32, 6)
    a(f'''v_lshrrev_b32 v4, 2, v1
v_and_b32 v5, 3, v1
v_lshl_add_u32 v4, v2, 3, v4
v_lshlrev_b32 v4, 6, v4
v_lshl_add_u32 v4, v5, 3, v4
s_and_b32 s44, s3, 1
s_lshl_b32 s6, s44, 5
v_add_u32 v4, s6, v4
s_lshl_b32 s6, s39, 1
s_add_u32 s6, s6, s44
s_lshl_b32 s6, s6, 4
v_add_u32 v5, s6, v1               ; n
v_mul_u32_u24 v7, 683, v5
v_lshrrev_b32 v7, 16, v7           ; rw = n/96
v_mul_u32_u24 v9, 96, v7
v_sub_u32 v5, v5, v9               ; n%96
v_mul_u32_u24 v9, 10923, v5
v_lshrrev_b32 v9, 16, v9           ; i' = (n%96)/6
v_mul_u32_u24 v6, 6, v9
v_sub_u32 v5, v5, v6               ; t
v_mad_u32_u24 v5, v7, 6, v5        ; nt
v_mul_u32_u24 v5, 12288, v5
v_lshl_add_u32 v5, v9, 4, v5
v_lshl_add_u32 v5, v2, 8, v5
s_lshr_b32 s6, s42, 1
s_lshl_b32 s6, s6, 10
s_add_u32 s45, s6, {WS_T2T}
s_waitcnt vmcnt(0)
s_barrier''')
    stamp(a, c, 2)
    if c.stamps: a('s_waitcnt lgkmcnt(0)')
    for s in range(12):
        o = L_W + 2048 * s
        a(f'ds_read_b64_tr_b16 v[{64+4*s}:{65+4*s}], v4 offset:{o}\nds_read_b64_tr_b16 v[{66+4*s}:{67+4*s}], v4 offset:{o+256}')
        a(f'ds_read_b128 v[{112+4*s}:{115+4*s}], v{32+s%4} offset:{256*(s//4)}\nds_read_b128 v[{160+4*s}:{163+4*s}], v{32+s%4} offset:{3072+256*(s//4)}')
        if s % 2: a('s_waitcnt lgkmcnt(6)')
    a('s_waitcnt lgkmcnt(0)')
    for s in range(12):
        a(mf(24, 112 + 4*s, 64 + 4*s, 24 if s else None)); a(mf(28, 160 + 4*s, 64 + 4*s, 28 if s else None))
    a('s_nop 7')
    for r in range(4): a(f'v_cvt_pk_bf16_f32 v{24+r}, v{24+2*r}, v{25+2*r}')
    a('''buffer_store_dwordx4 v[24:27], v5, s[32:35], s45 offen sc1
s_waitcnt vmcnt(0)
s_barrier
s_cmp_lg_u32 s3, 7
s_cbranch_scc1 H_t2done''')
    signal_last(a, c, C_T2, 36, F_T2, 44)
    a('H_t2done:')
    stamp(a, c, 4)
    a('s_cmp_ge_u32 s3, 4\ns_cbranch_scc1 H_wov')
    a('s_and_b32 s6, s3, 1\ns_lshl_b32 s6, s6, 2')
    for j in range(3):
        a(f'''v_add_u32 v4, {64*j}, v3
v_mul_u32_u24 v5, 2731, v4
v_lshrrev_b32 v5, 16, v5
v_mul_u32_u24 v6, 24, v5
v_sub_u32 v6, v4, v6
v_and_b32 v7, 2, v5
v_xor_b32 v6, v6, v7
v_xor_b32 v6, s6, v6
v_lshlrev_b32 v6, 4, v6
v_mul_u32_u24 v5, 3072, v5
v_add_u32 v6, v6, v5
v_subrev_u32 v{11+j}, {1024*j}, v6''')
    a(f'''s_mul_i32 s38, s36, 6
s_add_u32 s38, s38, s3
s_mul_i32 s39, s37, 384
s_mov_b32 s40, 12
H_w1l:
s_cmp_ge_u32 s38, 48
s_cselect_b32 s6, 48, 0
s_sub_u32 s38, s38, s6
s_mul_i32 s6, s38, {8*3072}
s_add_u32 s6, s6, s39
s_mul_i32 m0, s38, 3072
s_add_u32 s38, s38, 4''')
    for j in range(3): a(f'buffer_load_dwordx4 v{11+j}, s[12:15], s6 offen offset:{1024*j} lds')
    a(f's_waitcnt vmcnt({c.w1lag})\ns_sub_u32 s40, s40, 1\ns_cmp_lg_u32 s40, 0\ns_cbranch_scc1 H_w1l\ns_branch H_b3')
    a(f'''H_wov:
s_cmp_eq_u32 s3, 7
s_cbranch_scc1 H_b3
s_mul_i32 s38, s37, 3
s_add_u32 s38, s38, s3
s_sub_u32 s38, s38, 4            ; J = 3 jb + w'
s_cmp_ge_u32 s38, 12
s_cselect_b64 s[48:49], s[64:65], s[60:61]
s_cselect_b32 s6, 12, 0
s_mov_b32 s50, {SZ['lat_hi']}
s_mov_b32 s51, 0x20000
s_sub_u32 s6, s38, s6
s_mul_i32 s6, s6, {32*768}
s_add_u32 s7, s6, {16*768}
v_mul_u32_u24 v4, 768, v1
v_lshl_add_u32 v4, v2, 4, v4''')
    for s in range(12):
        a(f'buffer_load_dwordx4 v[{112+4*s}:{115+4*s}], v4, s[48:51], s6 offen offset:{64*s}')
        a(f'buffer_load_dwordx4 v[{160+4*s}:{163+4*s}], v4, s[48:51], s7 offen offset:{64*s}')
    a(f'''s_mul_i32 s39, s36, 36864
s_add_u32 s39, s39, {WS_T2T}
s_lshr_b32 s6, s38, 2
s_mul_i32 s6, s6, 24
s_mul_i32 s7, s36, 3
s_add_u32 s6, s6, s7
s_lshl_b32 s6, s6, 2
s_and_b32 s7, s38, 3
s_add_u32 s6, s6, s7
s_lshl_b32 s40, s6, 10
s_add_u32 s40, s40, {WS_WOV}
s_mov_b32 s41, 3''')
    wait_flag(a, c, F_T2, 44, 4)
    stamp(a, c, 5)
    BB = (16, 64, 208)
    for t in range(3):
        for s in range(12):
            a(f'buffer_load_dwordx4 v[{BB[t]+4*s}:{BB[t]+4*s+3}], v8, s[32:35], s39 offen offset:{1024*(s%4)} sc1')
            if s % 4 == 3: a('s_add_u32 s39, s39, 4096')
    for t in range(3):
        a(f's_waitcnt vmcnt({24-12*t+t})')
        for s in range(12):
            a(mf(4, 112 + 4*s, BB[t] + 4*s, 4 if s else None)); a(mf(12, 160 + 4*s, BB[t] + 4*s, 12 if s else None))
        a('s_nop 7')
        for r in range(2): a(f'v_cvt_pk_bf16_f32 v{BB[t]+r}, v{4+2*r}, v{5+2*r}')
        for r in range(2): a(f'v_cvt_pk_bf16_f32 v{BB[t]+2+r}, v{12+2*r}, v{13+2*r}')
        a(f'buffer_store_dwordx4 v[{BB[t]}:{BB[t]+3}], v8, s[32:35], s40 offen sc1\ns_add_u32 s40, s40, 4096')
    stamp(a, c, 6)
    a('H_b3:\ns_waitcnt vmcnt(0)')
    stamp(a, c, 7)
    if c.stamps:
        a('s_cmp_lt_u32 s2, 36\ns_cbranch_scc0 H_nst\ns_cmp_eq_u32 s3, 5\ns_cbranch_scc0 H_nst1'); stamp_out(a, c, 2)
        a('H_nst1:\ns_cmp_eq_u32 s3, 1\ns_cbranch_scc0 H_nst'); stamp_out(a, c, 3); a('H_nst:')
    a('''s_barrier
s_cmp_lg_u32 s3, 7
s_cbranch_scc1 H_nsig''')
    signal_last(a, c, C_WOV, NHLP, F_GO, 44)
    a('H_nsig:')
    stamp(a, c, 3)
    a('''s_waitcnt lgkmcnt(0)
s_cmp_ge_u32 s3, 4
s_cbranch_scc1 H_now1
v_lshrrev_b32 v4, 2, v1
v_lshl_add_u32 v6, v2, 3, v4
v_mul_u32_u24 v6, 384, v6
v_and_b32 v5, 3, v1
v_lshl_add_u32 v6, v5, 3, v6
v_lshrrev_b32 v4, 1, v4
v_and_b32 v5, 1, v2
v_lshl_add_u32 v4, v5, 1, v4
s_mul_i32 s6, s3, 3''')
    for t in range(3): a(f'v_xor_b32 v5, s6, v4\nv_lshl_add_u32 v{32+t}, v5, 5, v6\ns_add_u32 s6, s6, 1')
    for s in range(12):
        for t in range(3):
            if s and s % 4 == 0: a(f'v_add_u32 v{32+t}, {4*32*384}, v{32+t}')
            d = HWT + 48 * t + 4 * s
            off = (s % 4) * 32 * 384
            a(f'ds_read_b64_tr_b16 v[{d}:{d+1}], v{32+t} offset:{off}\nds_read_b64_tr_b16 v[{d+2}:{d+3}], v{32+t} offset:{off+4*384}')
        a('s_waitcnt lgkmcnt(6)')
    a(f'''s_waitcnt lgkmcnt(0)
H_now1:''')
    row_addr(a, False)
    a(f'''s_mul_i32 s38, s36, 6
s_add_u32 s38, s38, s3
s_lshl_b32 s6, s38, 6
s_and_b32 s6, s6, 128
v_xor_b32 v{SW}, s6, v{SW}
v_xor_b32 v{SW+1}, s6, v{SW+1}
v_xor_b32 v{SW+2}, s6, v{SW+2}
s_barrier
s_mul_i32 s39, s37, {192*768}
s_mov_b32 s40, 6
H_w2l:
s_cmp_ge_u32 s38, 48
s_cselect_b32 s6, 48, 0
s_sub_u32 s38, s38, s6
s_mul_i32 s7, s38, 3072
s_add_u32 s6, s7, s39
s_mov_b32 m0, s7
s_add_u32 s38, s38, 8''')
    for j in range(3): a(f'buffer_load_dwordx4 v{SW+j}, s[16:19], s6 offen offset:{1024*j} lds')
    a('''s_sub_u32 s40, s40, 1
s_cmp_lg_u32 s40, 0
s_cbranch_scc1 H_w2l
s_waitcnt vmcnt(0)
s_barrier
s_cmp_lt_u32 s3, 4
s_cbranch_scc1 H_m1''')
    mlp2(a, c)
    a('H_m1:')
    mlp1(a, c)

def mlp1(a, c):
    CS = 16; C0 = 24; C1 = 28; SEL = 32; LB = 48; HF = 48; D0 = 96; D1 = 100
    c1 = -2 * 0.7978845608028654 * LOG2E; c2 = c1 * 0.044715
    for r in range(4): a(f'v_mov_b32 v{20+r}, 0x3f803f80')
    a(f'''s_lshl_b32 s38, s36, 2
s_add_u32 s38, s38, s3              ; q
v_lshrrev_b32 v4, 1, v2
v_lshlrev_b32 v4, 8, v4
v_lshl_add_u32 v4, v1, 4, v4
v_and_b32 v5, 1, v2
v_lshl_add_u32 v4, v5, 3, v4        ; (g>>1)*256 + n*16 + (g&1)*8
v_and_b32 v6, 0xff, v4
s_mul_i32 s6, s38, 768
buffer_load_dwordx2 v[{LB}:{LB+1}], v4, s[8:11], s6 offen
buffer_load_dwordx2 v[{LB+2}:{LB+3}], v6, s[8:11], s6 offen offset:512
s_mul_i32 s6, s3, {HN_ST}
v_add_u32 v12, s6, v4               ; h write
v_mul_u32_u24 v9, 768, v2
v_lshl_add_u32 v9, v1, 4, v9        ; gather''')
    for s in range(12):
        for t in range(3): a(mf(64 + 4*t, 20, HWT + 48*t + 4*s, 64 + 4*t if s else None))
    a(f'''v_and_b32 v4, 1, v1
v_lshlrev_b32 v4, 4, v4
v_mov_b32 v5, 0x3f80
v_lshlrev_b32 v5, v4, v5
v_lshrrev_b32 v6, 1, v1''')
    for r in range(4):
        a(f'v_cmp_eq_u32 vcc, {r}, v6\ns_nop 1\nv_cndmask_b32 v{SEL+r}, 0, v5, vcc\nv_cmp_eq_u32 vcc, {r+4}, v6\ns_nop 1\nv_cndmask_b32 v{SEL+4+r}, 0, v5, vcc')
    for t in range(3): a(f'v_mov_b32 v{CS+t}, v{64+4*t}')
    a(f'''v_lshrrev_b32 v4, 2, v1
v_mul_u32_u24 v14, {HN_ST}, v4
v_lshl_add_u32 v14, v2, 4, v14
v_mul_u32_u24 v15, {G_ST}, v2
v_lshl_add_u32 v15, v1, 1, v15
s_mul_i32 s6, s3, 96
s_add_u32 s6, s6, {L_G}
v_add_u32 v15, s6, v15              ; G write
v_lshlrev_b32 v13, 3, v2
v_add_u32 v13, {L_ST}, v13
v_mov_b32 v19, {f2u(c1)}
s_mov_b32 s27, {f2u(c2)}
s_mul_i32 s46, s38, {12*768}
s_add_u32 s46, s46, {WS_HP}
s_add_u32 s47, s46, 3072
s_add_u32 s48, s46, 6144
s_mov_b32 s41, {WS_ML}
v_mul_u32_u24 v104, {HN_ST}, v2
v_lshl_add_u32 v104, v1, 1, v104
s_mul_i32 s6, s37, 96
v_add_u32 v104, s6, v104
v_mul_u32_u24 v105, 768, v2
v_lshl_add_u32 v105, v1, 1, v105
s_mul_i32 s42, s36, 3072
s_add_u32 s42, s42, s6
v_mul_u32_u24 v106, 12, v3
v_and_b32 v107, 7, v3
v_lshlrev_b32 v107, 9, v107
s_mul_i32 s43, s2, 6144
s_add_u32 s43, s43, {WS_OP}
s_add_u32 s44, s43, 3072
s_waitcnt vmcnt(0)''')
    for k in range(4): a(f'v_lshlrev_b32 v{C0+2*k}, 16, v{LB+k}\nv_and_b32 v{C0+2*k+1}, 0xffff0000, v{LB+k}')
    wait_flag(a, c, F_GO, 68, 8)
    a(f's_barrier\ns_mov_b32 s45, {1 if c.dry else 0}')
    stamp(a, c, 4)
    a('M_again:\ns_cmp_lg_u32 s45, 0\ns_cbranch_scc1 M_start')
    a(f'''s_mov_b32 s30, {c.spin}
M_gate:
buffer_load_dword v4, v107, s[32:35], s41 offen sc1
s_sub_u32 s30, s30, 1
s_cbranch_scc1 M_start
s_waitcnt vmcnt(0)
v_cmp_ne_u32 vcc, -1, v4
s_cbranch_vccnz M_start
s_sleep 8
s_branch M_gate
M_start:
s_mov_b32 s30, {c.spin}
M_poll:''')
    order = [(sg, cg) for cg in range(3) for sg in range(3)]
    for k, (sg, cg) in enumerate(order):
        a(f'buffer_load_dwordx4 v[{LB+4*k}:{LB+4*k+3}], v9, s[32:35], s{46+sg} offen offset:{256*cg} sc1')
    for k, (sg, cg) in enumerate(order):
        D, C = (D0, C0) if cg < 2 else (D1, C1)
        a(f's_waitcnt vmcnt({8-k})')
        a(mf(D, SEL + (4 if cg == 1 else 0), LB + 4*k, C if k in (0, 6) else D))
    a(f'''s_nop 5
v_cvt_pk_bf16_f32 v20, v{D0}, v{D0+1}
v_cvt_pk_bf16_f32 v21, v{D0+2}, v{D0+3}
v_cmp_u_f32 vcc, v{D0}, v{D1}
v_cvt_pk_bf16_f32 v22, v{D1}, v{D1+1}
v_cvt_pk_bf16_f32 v23, v{D1+2}, v{D1+3}
s_cbranch_vccnz M_fix
M_ok:
ds_write_b64 v12, v[20:21]
s_mov_b64 exec, 0xffffffff
ds_write_b64 v12, v[22:23] offset:512
s_mov_b64 exec, -1''')
    stamp(a, c, 5)
    a('s_waitcnt lgkmcnt(0)\ns_barrier')
    for s in range(12): a(f'ds_read_b128 v[{HF+4*s}:{HF+4*s+3}], v14 offset:{64*s}')
    DG = (96, 100, 108)
    for s in range(12):
        if s < 8: a(f's_waitcnt lgkmcnt({11-s})')
        if s == 8: a('s_waitcnt lgkmcnt(0)\ns_barrier\nds_read_b64 v[4:5], v13')
        for t in range(3): a(mf(DG[t], HF + 4*s, HWT + 48*t + 4*s, DG[t] if s else None))
    a('s_waitcnt lgkmcnt(0)')
    for t in range(3): a(f'v_mul_f32 v{20+t}, v5, v{CS+t}')
    a('s_nop 1')
    for t in range(3): a(f'v_fma_f32 v{20+t}, v{DG[t]}, v4, -v{20+t}')
    for t in range(3): a(f'v_mul_f32 v{LB+t}, v{20+t}, v{20+t}')
    for t in range(3): a(f'v_fma_f32 v{LB+t}, v{LB+t}, s27, v19')
    for t in range(3): a(f'v_mul_f32 v{LB+t}, v{LB+t}, v{20+t}')
    for t in range(3): a(f'v_exp_f32 v{LB+t}, v{LB+t}')
    for t in range(3): a(f'v_add_f32 v{LB+t}, 1.0, v{LB+t}')
    for t in range(3): a(f'v_rcp_f32 v{LB+t}, v{LB+t}')
    for t in range(3): a(f'v_mul_f32 v{20+t}, v{20+t}, v{LB+t}')
    a('''v_cvt_pk_bf16_f32 v20, v20, v21
v_cvt_pk_bf16_f32 v22, v22, v22
ds_write_b16 v15, v20
ds_write_b16_d16_hi v15, v20 offset:32
ds_write_b16 v15, v22 offset:64
s_waitcnt lgkmcnt(0)
s_barrier
s_cmp_lg_u32 s3, 0
s_cbranch_scc1 M_end''')
    stamp(a, c, 6)
    a(f'''ds_read_u16 v20, v104
ds_read_u16 v21, v104 offset:64
ds_read_u16 v22, v104 offset:32
s_mov_b32 s30, {c.spin}
s_waitcnt lgkmcnt(0)
v_lshlrev_b32 v20, 16, v20
v_lshlrev_b32 v21, 16, v21
v_lshlrev_b32 v22, 16, v22
F_poll:''')
    for k in range(8): a(f'buffer_load_dwordx3 v[{LB+4*k}:{LB+4*k+2}], v106, s[32:35], s{43+k//4} offen offset:{768*(k%4)} sc1')
    for k in range(8):
        a(f's_waitcnt vmcnt({7-k})')
        for r in range(3): a(f'v_add_f32 v{96+r}, v{96+r if k else 20+r}, v{LB+4*k+r}')
    a('''v_add_f32 v4, v96, v97
v_cmp_u_f32 vcc, v4, v98
v_cvt_pk_bf16_f32 v4, v96, v98
v_cvt_pk_bf16_f32 v5, v97, v97
s_cbranch_vccnz F_fix
F_ok:
s_cmp_lg_u32 s45, 0
s_cbranch_scc1 M_end
buffer_store_short v4, v105, s[20:23], s42 offen
buffer_store_short_d16_hi v4, v105, s[20:23], s42 offen offset:32
buffer_store_short v5, v105, s[20:23], s42 offen offset:64''')
    if c.stamps:
        a('s_waitcnt vmcnt(0)'); stamp(a, c, 7); stamp_out(a, c, 0)
    a('''M_end:
s_cmp_lg_u32 s45, 0
s_mov_b32 s45, 0
s_cbranch_scc0 K_done
s_barrier
s_branch M_again
M_fix:
s_cmp_lg_u32 s45, 0
s_cbranch_scc1 M_ok
s_sub_u32 s30, s30, 1
s_cbranch_scc1 M_ok
s_and_b32 s25, s30, 63
s_cbranch_scc1 M_poll''')
    maxu(a, 4, range(LB, LB + 36))
    a('''v_cmp_eq_u32 vcc, -1, v4
s_cbranch_vccnz M_poll
s_branch M_ok
F_fix:
s_cmp_lg_u32 s45, 0
s_cbranch_scc1 F_ok
s_sub_u32 s30, s30, 1
s_cbranch_scc1 F_ok
s_and_b32 s25, s30, 63
s_cbranch_scc1 F_poll''')
    maxu(a, 6, [LB + 4*k + r for k in range(8) for r in range(3)])
    a('v_cmp_eq_u32 vcc, -1, v6\ns_cbranch_vccnz F_poll\ns_branch F_ok')

def mlp2(a, c):
    a('''s_sub_u32 s38, s3, 4
v_lshrrev_b32 v4, 2, v1
v_lshl_add_u32 v6, v2, 3, v4
v_mul_u32_u24 v6, 768, v6
v_and_b32 v5, 3, v1
v_lshl_add_u32 v6, v5, 3, v6
v_and_b32 v5, 1, v2
v_lshl_add_u32 v4, v5, 2, v4
s_mul_i32 s6, s38, 6''')
    for t in range(6): a(f'v_xor_b32 v5, s6, v4\nv_lshl_add_u32 v{32+t}, v5, 5, v6\ns_add_u32 s6, s6, 1')
    for s in range(6):
        for t in range(6):
            if s and s % 2 == 0: a(f'v_add_u32 v{32+t}, {2*32*768}, v{32+t}')
            d = HWT + 24 * t + 4 * s
            off = (s % 2) * 32 * 768
            a(f'ds_read_b64_tr_b16 v[{d}:{d+1}], v{32+t} offset:{off}\nds_read_b64_tr_b16 v[{d+2}:{d+3}], v{32+t} offset:{off+4*768}')
            if t % 3 == 2: a('s_waitcnt lgkmcnt(6)')
    a(f'''v_lshrrev_b32 v4, 2, v1
v_mul_u32_u24 v14, {G_ST}, v4
v_lshl_add_u32 v14, v2, 4, v14
v_add_u32 v14, {L_G}, v14
v_mul_u32_u24 v15, 12, v3
s_mul_i32 s6, s38, {HN_ST}
v_add_u32 v12, s6, v8
s_lshl_b32 s6, s38, 3
s_add_u32 s6, s6, {L_ST}
v_mov_b32 v13, s6
s_lshl_b32 s6, s36, 3
s_lshl_b32 s7, s38, 1
s_add_u32 s6, s6, s7
s_mul_i32 s6, s6, 6144
s_mul_i32 s7, s37, 768
s_add_u32 s6, s6, s7
s_add_u32 s43, s6, {WS_OP}
s_add_u32 s44, s6, {WS_DUMMY + 0x50000}
s_mov_b32 s26, {f2u(1/384)}
s_mov_b32 s45, {1 if c.dry else 0}''')
    for r in range(4): a(f'v_mov_b32 v{20+r}, 0')
    a(f'''s_waitcnt lgkmcnt(0)
s_barrier
N_again:
s_cmp_lg_u32 s45, 0
s_cselect_b32 s40, s44, s43
s_add_u32 s41, s40, 6144
s_barrier
s_mov_b32 exec_hi, 0xffff
ds_read_b128 v[20:23], v12
s_mov_b32 exec_hi, -1
s_waitcnt lgkmcnt(0)''')
    for r in range(4): a(f'v_lshlrev_b32 v{24+2*r}, 16, v{20+r}\nv_and_b32 v{25+2*r}, 0xffff0000, v{20+r}')
    a('v_add_f32 v4, v24, v25\nv_mul_f32 v5, v24, v24\nv_fmac_f32 v5, v25, v25')
    for r in range(2, 8): a(f'v_add_f32 v4, v4, v{24+r}\nv_fmac_f32 v5, v{24+r}, v{24+r}')
    a('s_nop 0')
    row_reduce(a, [4, 5], 'v_add_f32')
    for sw in ('32', '16'):
        a(f'''v_mov_b32 v6, v4
v_mov_b32 v7, v5
s_nop 0
v_permlane{sw}_swap_b32 v6, v4
v_permlane{sw}_swap_b32 v7, v5
s_nop 0
v_add_f32 v4, v4, v6
v_add_f32 v5, v5, v7''')
    a(f'''v_mul_f32 v7, s26, v4
v_mul_f32 v6, v7, v7
v_fma_f32 v5, v5, s26, -v6
v_max_f32 v5, 0, v5
v_add_f32 v5, {f2u(1e-5)}, v5
v_rsq_f32 v6, v5
s_nop 0
v_mul_f32 v7, v7, v6
ds_write_b64 v13, v[6:7]
s_waitcnt lgkmcnt(0)
s_barrier
s_barrier''')
    for s in range(6): a(f'ds_read_b128 v[{32+4*s}:{35+4*s}], v14 offset:{64*s}')
    for half in range(2):
        for s in range(6):
            if half == 0: a(f's_waitcnt lgkmcnt({5-s})')
            for t in range(3 * half, 3 * half + 3):
                a(mf(64 + 4*t, 32 + 4*s, HWT + 24*t + 4*s, 64 + 4*t if s else None))
            if half == 1 and s == 2:
                a('v_mov_b32 v67, v72\nbuffer_store_dwordx3 v[66:68], v15, s[32:35], s40 offen sc1')
    a('''s_nop 7
v_mov_b32 v79, v84
buffer_store_dwordx3 v[78:80], v15, s[32:35], s41 offen sc1
s_cmp_lg_u32 s45, 0
s_mov_b32 s45, 0
s_cbranch_scc0 K_done
s_barrier
s_branch N_again''')

def gen(fn, **kw):
    c = Cfg()
    d = dict(stamps=False, flags='nt', lag=36, la=8, wq=2, xr=9, drop=(), prio=0, thr=24.0, mlpos=11, dry=False, progressive=True,
             spin=1 << 16, adelay=1, filldelay=3, godelay=12, bell_any=True, wovpace=False, w1lag=3, flpace=0, flfl='sc1', rgate=True, bsleep=0, nst=18)
    d.update(kw); c.__dict__.update(d)
    uid[0] = 0
    a = Asm()
    a(f'; @launch grid=(256,1,1) block=(512,1,1) lds={LDS_BYTES}')
    a('.amdgcn_target "amdgcn-amd-amdhsa--gfx950"\n.text')
    a(head(NAME + '_kernel'))
    a('s_cmp_ge_u32 s2, 256\ns_cbranch_scc1 K_done')
    if c.stamps:
        stamp(a, c, 0); a('s_waitcnt lgkmcnt(0)')
        for k in range(1, 8): a(f's_mov_b64 s[{70+2*k}:{71+2*k}], s[70:71]')
    a(f'''v_lshrrev_b32 v1, 6, v0
s_cmp_lt_u32 s2, {NHLP}
v_readfirstlane_b32 s3, v1
s_cbranch_scc1 K_helper
s_load_dwordx4 s[4:7], s[0:1], 8
s_load_dwordx4 s[52:55], s[0:1], 88
s_sub_u32 s36, s2, {NHLP}
s_and_b32 s16, s36, 7
s_mul_i32 s16, s16, 24
s_lshr_b32 s17, s36, 3
s_add_u32 s37, s16, s17
s_lshr_b32 s38, s37, 4
s_and_b32 s39, s37, 15
s_waitcnt lgkmcnt(0)''')
    for d_, s, n in ((8,4,'hi'),(12,6,'lo'),(32,54,'ws'),(88,52,'dbg')): mksrd(a, d_, s, n)
    a('''s_cmp_lt_u32 s3, 4
s_cbranch_scc1 K_compute
s_sub_u32 s3, s3, 4
s_cmp_lg_u32 s3, 0
s_cbranch_scc1 K_service''')
    loader(a, c)
    a(f'v_lshlrev_b32 v8, 4, v2\nv_mov_b32 v19, {L_CTL}\ns_branch S_go\nK_service:')
    service(a, c)
    rstage(a, c)
    a('K_compute:')
    compute(a, c)
    a('K_helper:')
    helper(a, c)
    a('K_done:\ns_endpgm')
    a('.section .rodata,"a"\n.p2align 6'); a(kd(NAME + '_kernel', 256, 102))
    open(fn, 'w').write(a.text())
if __name__ == '__main__':
    gen('f.s'); gen('f_st.s', stamps=True)
    gen('y0.s', stamps=True, nst=24)
    gen('y1.s', stamps=True, nst=21)
    gen('y2.s', stamps=True, nst=14)
    gen('y3.s', stamps=True, lag=30)
    gen('y4.s', stamps=True, lag=24)
```
